```python
import torch

def _softmax(x, axis=-1):
    return torch.softmax(x, dim=axis)
def _gelu(x):
    return torch.nn.functional.gelu(x, approximate="tanh")
def _silu(x):
    return torch.nn.functional.silu(x)
def _sigmoid(x):
    return torch.sigmoid(x)
def _layernorm(x, axis=-1, eps=1e-5):
    m = x.mean(dim=axis, keepdim=True)
    v = x.var(dim=axis, keepdim=True, unbiased=False)
    return (x - m) / torch.sqrt(v + eps)
def _scatter_add(tgt, idx, src, axis=0):
    return tgt.clone().index_add_(axis, idx, src)
def _segment_sum(src, seg, n):
    out = torch.zeros((n,) + src.shape[1:], dtype=src.dtype)
    return out.index_add_(0, seg, src)
def _pad(x, pw):
    flat = tuple(v for pair in reversed(pw) for v in pair)
    return torch.nn.functional.pad(x, flat)

kernel_name = 'concat_heads__mha_block_cached__gqa_block_cached__near_ridge'

def setup_inputs():

    _w = (lambda a: (lambda t: t.to(torch.bfloat16) if t.is_floating_point() else t)(torch.as_tensor(a)))
    def _A_setup():
        B, Sq, D = 8, 144, 640
        H, Sk, Dh = 32, 512, 128
        return {
            "x": _w((lambda *s: torch.randn(*s, dtype=torch.bfloat16) * 0.8)(B, Sq, D)),
            "k_cache": _w((lambda *s: torch.randn(*s, dtype=torch.bfloat16) * 0.8)(B, H, Sk, Dh)),
            "v_cache": _w((lambda *s: torch.randn(*s, dtype=torch.bfloat16) * 0.05)(B, H, Sk, Dh)),
            "wq": _w((lambda *s: torch.randn(*s, dtype=torch.bfloat16) * 0.8)(D, H * Dh) * (D ** -0.5)),
            "wo": _w((lambda *s: torch.randn(*s, dtype=torch.bfloat16) * 0.05)(H * Dh, D) * ((H * Dh) ** -0.5)),
        }
    _A_in = _A_setup()

    def _B_setup():
        B, Sq, D = 8, 144, 640
        Hq, Hkv, Sk, Dh = 32, 32, 512, 128
        assert Hq % Hkv == 0, (Hq, Hkv)
        return {
            "x": _w((lambda *s: torch.randn(*s, dtype=torch.bfloat16) * 0.8)(B, Sq, D)),
            "k_cache": _w((lambda *s: torch.randn(*s, dtype=torch.bfloat16) * 0.8)(B, Hkv, Sk, Dh)),
            "v_cache": _w((lambda *s: torch.randn(*s, dtype=torch.bfloat16) * 0.05)(B, Hkv, Sk, Dh)),
            "wq": _w((lambda *s: torch.randn(*s, dtype=torch.bfloat16) * 0.8)(D, Hq * Dh) * (D ** -0.5)),
            "wo": _w((lambda *s: torch.randn(*s, dtype=torch.bfloat16) * 0.05)(Hq * Dh, D) * ((Hq * Dh) ** -0.5)),
        }
    _B_in = _B_setup()

    return {
        "A_x": _A_in["x"],
        "A_k_cache": _A_in["k_cache"],
        "A_v_cache": _A_in["v_cache"],
        "A_wq": _A_in["wq"],
        "A_wo": _A_in["wo"],
        "B_x": _B_in["x"],
        "B_k_cache": _B_in["k_cache"],
        "B_v_cache": _B_in["v_cache"],
        "B_wq": _B_in["wq"],
        "B_wo": _B_in["wo"],
    }

def reference(A_x, A_k_cache, A_v_cache, A_wq, A_wo, B_x, B_k_cache, B_v_cache, B_wq, B_wo):
    def _A_ref(x, k_cache, v_cache, wq, wo):
        B, Sq, D = x.shape
        H, Dh = 32, 128
        q = (lambda x, *d: x.permute(*d))((x @ wq).reshape(B, Sq, H, Dh), 0, 2, 1, 3)
        scores = torch.einsum("bhqd,bhkd->bhqk", q, k_cache) * (Dh ** -0.5)
        p = _softmax(scores, axis=-1)
        o = torch.einsum("bhqk,bhkd->bhqd", p, v_cache)
        return (lambda x, *d: x.permute(*d))(o, 0, 2, 1, 3).reshape(B, Sq, H * Dh) @ wo

    def _B_ref(x, k_cache, v_cache, wq, wo):
        B, Sq, D = x.shape
        Hq, Dh = 32, 128
        Hkv = k_cache.shape[1]
        rep = Hq // Hkv
        q = (lambda x, *d: x.permute(*d))((x @ wq).reshape(B, Sq, Hq, Dh), 0, 2, 1, 3)
        k = (lambda x, n, axis: torch.repeat_interleave(x, n, dim=axis))(k_cache, rep, axis=1)
        v = (lambda x, n, axis: torch.repeat_interleave(x, n, dim=axis))(v_cache, rep, axis=1)
        scores = torch.einsum("bhqd,bhkd->bhqk", q, k) * (Dh ** -0.5)
        p = _softmax(scores, axis=-1)
        o = torch.einsum("bhqk,bhkd->bhqd", p, v)
        return (lambda x, *d: x.permute(*d))(o, 0, 2, 1, 3).reshape(B, Sq, Hq * Dh) @ wo

    a = _A_ref(A_x, A_k_cache, A_v_cache, A_wq, A_wo)
    b = _B_ref(B_x, B_k_cache, B_v_cache, B_wq, B_wo)
    return torch.concatenate([a, b], axis=-1)
```

```python
from contextlib import contextmanager


class R:
    __slots__ = ("k", "n", "c")

    def __init__(self, k, n, c=1):
        self.k, self.n, self.c = k, n, c

    def __getitem__(self, i):
        if isinstance(i, slice):
            a = i.start or 0
            b = self.c if i.stop is None else i.stop
            assert 0 <= a < b <= self.c
            return R(self.k, self.n + a, b - a)
        assert 0 <= i < self.c, (i, self.c)
        return R(self.k, self.n + i, 1)

    def regs(self):
        return {(self.k, self.n + i) for i in range(self.c)}

    def __str__(self):
        if self.c == 1:
            return f"{self.k}{self.n}"
        return f"{self.k}[{self.n}:{self.n + self.c - 1}]"


def V(n, c=1):
    return R("v", n, c)


def A(n, c=1):
    return R("a", n, c)


def S(n, c=1):
    return R("s", n, c)


def _regs(ops):
    s = set()
    for o in ops:
        if isinstance(o, R):
            s |= o.regs()
        elif isinstance(o, str) and o in ("vcc", "m0", "exec", "scc"):
            s.add((o, 0))
    return s


class I:
    __slots__ = ("text", "kind", "rd", "wr", "ab", "cc", "d", "tag", "wait", "wide", "nop")

    def __init__(self, text, kind, rd=(), wr=(), ab=None, cc=None, d=None, tag=None, wait=None, wide=False, nop=0):
        self.text, self.kind = text, kind
        self.rd, self.wr = _regs(rd), _regs(wr)
        self.ab, self.cc, self.d = ab, cc, d
        self.tag, self.wait, self.wide, self.nop = tag, wait, wide, nop


class Asm:
    def __init__(self):
        self.out = []
        self.cur = None
        self.hist = []
        self.pos = 0
        self.vm = []
        self.lg = []
        self.n_nops = 0
        self.counts = {}

    @contextmanager
    def capture(self):
        old = self.cur
        lst = []
        self.cur = lst
        try:
            yield lst
        finally:
            self.cur = old

    def put(self, ins):
        if self.cur is not None:
            self.cur.append(ins)
        else:
            self._emit(ins)

    def emit_list(self, lst):
        for i in lst:
            self.put(i)

    def interleave(self, main, fill, per=None):
        nm, nf = len(main), len(fill)
        fi = 0
        for k, m in enumerate(main):
            self.put(m)
            tgt = (k + 1) * nf // nm if per is None else min(nf, (k + 1) * per)
            while fi < tgt:
                self.put(fill[fi])
                fi += 1
        while fi < nf:
            self.put(fill[fi])
            fi += 1

    def raw(self, text):
        assert self.cur is None
        self.out.append(text)

    def label(self, name):
        assert self.cur is None
        self._line("s_nop 7")
        self._line("s_nop 7")
        self.pos += 16
        self.hist = []
        self.out.append(name + ":")

    def _line(self, t):
        self.out.append(t)

    def _need(self, p, c):
        n = 0
        pk, ck = p.kind, c.kind
        pv = pk in ("valu", "trans", "rfl", "perml")
        if pv:
            ov = p.wr & c.rd
            if ov:
                vg = any(r[0] in "va" for r in ov)
                sg = any(r[0] in ("s", "vcc") for r in ov)
                if ck == "mfma" and vg:
                    n = max(n, 2)
                if ck == "perml" and vg:
                    n = max(n, 2)
                if ck == "rfl" and vg:
                    n = max(n, 1)
                if pk == "trans" and ck != "trans":
                    n = max(n, 1)
                if sg and ck in ("vmem",):
                    n = max(n, 5)
                if sg and ck in ("valu", "trans", "perml", "rfl", "mfma"):
                    n = max(n, 2)
        if pk == "mfma":
            if ck == "mfma":
                if p.d & c.ab:
                    n = max(n, 8)
                if c.cc and (p.d & c.cc) and p.d != c.cc:
                    n = max(n, 6)
            elif ck in ("valu", "trans", "rfl", "perml", "vmem", "ds"):
                if p.d & (c.rd | c.wr):
                    n = max(n, 8)
                if p.cc and ck != "vmem" and ck != "ds" and (p.cc & c.wr):
                    n = max(n, 3)
        if pk == "salu" and ("m0", 0) in p.wr and ck == "vmem" and ("m0", 0) in c.rd:
            n = max(n, 1)
        if pk == "vmem" and p.wide and (p.rd & c.wr) and any(r[0] in "va" for r in (p.rd & c.wr)):
            n = max(n, 2)
        return n

    def _emit(self, ins):
        if ins.kind == "wait":
            vm_tags, lg_tags, extra = ins.wait
            parts = []
            if vm_tags is not None:
                if vm_tags == "all":
                    nv = 0
                else:
                    idx = -1
                    for i, t in enumerate(self.vm):
                        if t in vm_tags:
                            idx = i
                    nv = len(self.vm) - 1 - idx if idx >= 0 else len(self.vm)
                    nv = min(nv, 63)
                parts.append(f"vmcnt({nv})")
                if nv == 0:
                    self.vm = []
                else:
                    self.vm = self.vm[len(self.vm) - nv:] if nv < len(self.vm) else self.vm
            if lg_tags is not None:
                if lg_tags == "all":
                    nl = 0
                else:
                    idx = -1
                    for i, t in enumerate(self.lg):
                        if t in lg_tags:
                            idx = i
                    nl = len(self.lg) - 1 - idx if idx >= 0 else len(self.lg)
                    nl = min(nl, 15)
                parts.append(f"lgkmcnt({nl})")
                if nl == 0:
                    self.lg = []
                else:
                    self.lg = self.lg[len(self.lg) - nl:] if nl < len(self.lg) else self.lg
            ins.text = "s_waitcnt " + " ".join(parts)
        need = 0
        for (pp, p) in self.hist:
            n = self._need(p, ins)
            if n:
                dist = self.pos - pp - 1
                need = max(need, n - dist)
        if need > 0:
            self._line(f"s_nop {need - 1}")
            self.pos += need
            self.n_nops += 1
        self._line(ins.text)
        self.counts[ins.kind] = self.counts.get(ins.kind, 0) + 1
        self.hist.append((self.pos, ins))
        self.pos += 1 + ins.nop
        if len(self.hist) > 24:
            self.hist = self.hist[-24:]
        if ins.kind == "vmem":
            self.vm.append(ins.tag)
        elif ins.kind == "ds":
            self.lg.append(ins.tag)

    def salu(self, op, d, *src):
        wr = [d] if d is not None else []
        ops = ([d] if d is not None else []) + list(src)
        self.put(I(f"{op} " + ", ".join(str(o) for o in ops), "salu", rd=src, wr=wr))

    def valu(self, op, d, *src, kind="valu", extra_rd=(), mods=None):
        ops = [d] + list(src)
        strs = [str(o) for o in ops]
        if mods:
            for k, m in mods.items():
                strs[k] = m.format(strs[k])
        self.put(I(f"{op} " + ", ".join(strs), kind, rd=list(src) + list(extra_rd), wr=[d]))

    def trans(self, op, d, s):
        self.valu(op, d, s, kind="trans")

    def rfl(self, d, s):
        self.put(I(f"v_readfirstlane_b32 {d}, {s}", "rfl", rd=[s], wr=[d]))

    def permlane(self, which, a, b):
        self.put(I(f"v_permlane{which}_swap_b32 {a}, {b}", "perml", rd=[a, b], wr=[a, b]))

    def mfma(self, d, a, b, c):
        cc = c.regs() if isinstance(c, R) else None
        rd = [a, b] + ([c] if isinstance(c, R) else [])
        self.put(I(f"v_mfma_f32_16x16x32_bf16 {d}, {a}, {b}, {c}", "mfma", rd=rd, wr=[d],
                   ab=a.regs() | b.regs(), cc=cc, d=d.regs()))

    def bload(self, d, voff, srd, soff, off=0, tag=None, flags=""):
        n = {1: "dword", 2: "dwordx2", 4: "dwordx4"}[d.c]
        assert 0 <= off < 4096
        o = f" offset:{off}" if off else ""
        self.put(I(f"buffer_load_{n} {d}, {voff}, {srd}, {soff} offen{o}{flags}", "vmem",
                   rd=[voff, srd, soff], wr=[d], tag=tag))

    def bload_lds(self, voff, srd, soff, tag=None, flags=""):
        self.put(I(f"buffer_load_dwordx4 {voff}, {srd}, {soff} offen{flags} lds", "vmem",
                   rd=[voff, srd, soff, "m0"], wr=[], tag=tag))

    def bstore(self, s, voff, srd, soff, off=0, tag=None, flags=""):
        n = {1: "dword", 2: "dwordx2", 4: "dwordx4"}[s.c]
        assert 0 <= off < 4096
        o = f" offset:{off}" if off else ""
        self.put(I(f"buffer_store_{n} {s}, {voff}, {srd}, {soff} offen{o}{flags}", "vmem",
                   rd=[s, voff, srd, soff], wr=[], tag=tag, wide=s.c >= 3))

    def dsread(self, d, addr, off=0, tag=None):
        n = {1: "b32", 2: "b64", 4: "b128"}[d.c]
        assert 0 <= off < 65536, off
        o = f" offset:{off}" if off else ""
        self.put(I(f"ds_read_{n} {d}, {addr}{o}", "ds", rd=[addr], wr=[d], tag=tag))

    def dswrite(self, addr, s, off=0, tag=None):
        n = {1: "b32", 2: "b64", 4: "b128"}[s.c]
        assert 0 <= off < 65536, off
        o = f" offset:{off}" if off else ""
        self.put(I(f"ds_write_{n} {addr}, {s}{o}", "ds", rd=[addr, s], wr=[], tag=tag))

    def wait(self, vm=None, lg=None):
        if vm is not None and vm != "all":
            vm = set(vm) if not isinstance(vm, str) else {vm}
        if lg is not None and lg != "all":
            lg = set(lg) if not isinstance(lg, str) else {lg}
        self.put(I("", "wait", wait=(vm, lg, None)))

    def barrier(self):
        self.put(I("s_barrier", "other"))

    def other(self, text):
        self.put(I(text, "other"))

    def text(self):
        return "\n".join(self.out) + "\n"
```

```python
import struct
import sys
from asmlib import Asm, V, A, S, R

NAME = "concat_heads__mha_block_cached__gqa_block_cached__near_ridge"

HEADER = open("cdna_kernels/%s.s.ref" % NAME).read().split("; Override launch geometry")[0]


def f32bits(x):
    return struct.unpack("<I", struct.pack("<f", x))[0]


CSCALE = (128 ** -0.5) * 1.4426950408889634

L_Q = [0, 36864]
L_X = [73728, 110592]
L_ST = 147456
LDS1 = 147456 + 2 * 4608

OWS_P = 72 * 128 * 1024


def load_ptrs(a):
    a.other("s_load_dwordx16 s[16:31], s[0:1], 0")
    a.other("s_load_dwordx8 s[32:39], s[0:1], 64")
    a.other("s_load_dwordx2 s[40:41], s[0:1], 96")


def mk_srd(a, d, base_lo, base_hi, nrec):
    a.salu("s_mov_b32", S(d), base_lo)
    a.salu("s_and_b32", S(d + 1), base_hi, "0xffff")
    a.salu("s_mov_b32", S(d + 2), nrec)
    a.salu("s_mov_b32", S(d + 3), "0x20000")


def gen_attn(a):
    a.raw(".p2align 8")
    a.raw("attn_kernel:")
    a.other("s_cmp_ge_u32 s2, 256")
    a.other("s_cbranch_scc1 L_attn_end")
    load_ptrs(a)
    sW, sP, sHP, sB = S(3), S(4), S(5), S(6)
    sC, sLO, sHI = S(10), S(11), S(12)
    srdX, srdK, srdV, srdWQ, srdWS = S(44, 4), S(48, 4), S(52, 4), S(56, 4), S(60, 4)
    a.salu("s_and_b32", S(7), S(2), 7)
    a.salu("s_lshr_b32", S(8), S(2), 3)
    a.salu("s_lshr_b32", sP, S(7), 2)
    a.salu("s_and_b32", S(7), S(7), 3)
    a.salu("s_lshl_b32", S(7), S(7), 2)
    a.salu("s_and_b32", S(9), S(8), 3)
    a.salu("s_add_u32", sHP, S(7), S(9))
    a.salu("s_lshr_b32", sB, S(8), 2)
    a.salu("s_mov_b32", sC, hex(f32bits(CSCALE)))
    a.salu("s_mov_b32", sLO, "0x05040100")
    a.salu("s_mov_b32", sHI, "0x07060302")
    vT = V(0)
    vLane, vQ, vG, vWv = V(1), V(2), V(3), V(4)
    a.valu("v_and_b32", vLane, 63, vT)
    a.valu("v_and_b32", vQ, 15, vT)
    a.valu("v_lshrrev_b32", vG, 4, vLane)
    a.valu("v_lshrrev_b32", vWv, 6, vT)
    a.rfl(sW, vWv)
    a.other("s_waitcnt lgkmcnt(0)")
    a.other("s_cmp_eq_u32 s4, 0")
    for i in range(4):
        a.put(__import__("asmlib").I(f"s_cselect_b64 s[{64 + 2 * i}:{65 + 2 * i}], s[{16 + 2 * i}:{17 + 2 * i}], s[{26 + 2 * i}:{27 + 2 * i}]", "salu"))
    a.salu("s_mul_i32", S(7), sB, 184320)
    a.salu("s_add_u32", S(8), S(64), S(7))
    a.salu("s_addc_u32", S(9), S(65), 0)
    mk_srd(a, 44, S(8), S(9), 184320)
    a.salu("s_lshl_b32", S(7), sB, 5)
    a.salu("s_lshl_b32", S(8), sHP, 1)
    a.salu("s_add_u32", S(7), S(7), S(8))
    a.salu("s_lshl_b32", S(7), S(7), 17)
    a.salu("s_add_u32", S(8), S(66), S(7))
    a.salu("s_addc_u32", S(9), S(67), 0)
    mk_srd(a, 48, S(8), S(9), 262144)
    a.salu("s_add_u32", S(8), S(68), S(7))
    a.salu("s_addc_u32", S(9), S(69), 0)
    mk_srd(a, 52, S(8), S(9), 262144)
    a.salu("s_lshl_b32", S(7), sHP, 9)
    a.salu("s_add_u32", S(8), S(70), S(7))
    a.salu("s_addc_u32", S(9), S(71), 0)
    a.salu("s_sub_u32", S(13), 640 * 8192, S(7))
    mk_srd(a, 56, S(8), S(9), S(13))
    a.salu("s_mul_i32", S(7), sP, OWS_P)
    a.salu("s_add_u32", S(8), S(40), S(7))
    a.salu("s_addc_u32", S(9), S(41), 0)
    mk_srd(a, 60, S(8), S(9), OWS_P)
    sOB, sW64, sW9K = S(72), S(73), S(74)
    a.salu("s_mul_i32", S(7), sB, 9 * 128)
    a.salu("s_lshl_b32", S(8), sHP, 3)
    a.salu("s_add_u32", S(7), S(7), S(8))
    a.salu("s_lshl_b32", sOB, S(7), 10)
    a.salu("s_lshl_b32", sW64, sW, 6)
    a.salu("s_mul_i32", sW9K, sW, 9216)

    vK, vV, vW, vX = V(5), V(6), V(7), V(8)
    vL = [V(9), V(10), V(11)]
    vQW, vST, vSR, vRW, vRR, vOS = V(12), V(13), V(14), V(15), V(96), V(97)
    t0, t1 = V(98), V(99)
    a.valu("v_lshlrev_b32", t0, 15, vWv)
    a.valu("v_lshl_add_u32", t1, vQ, 8, t0)
    a.valu("v_lshl_add_u32", vK, vG, 4, t1)
    a.valu("v_lshl_add_u32", t1, vG, 10, t0)
    a.valu("v_lshl_add_u32", vV, vQ, 4, t1)
    a.valu("v_lshlrev_b32", t0, 16, vG)
    a.valu("v_lshl_add_u32", t0, vWv, 7, t0)
    a.valu("v_lshl_add_u32", vW, vQ, 3, t0)
    a.valu("v_mul_u32_u24", t0, 1280, vQ)
    a.valu("v_lshl_add_u32", vX, vG, 4, t0)
    a.valu("v_lshlrev_b32", vL[0], 4, vLane)
    a.valu("v_add_u32", vL[1], 65536, vL[0])
    a.valu("v_add_u32", vL[2], 131072, vL[0])
    a.valu("v_lshrrev_b32", t0, 1, vWv)
    a.valu("v_mul_u32_u24", t0, 36864, t0)
    a.valu("v_and_b32", t1, 1, vWv)
    a.valu("v_lshl_add_u32", t0, t1, 11, t0)
    a.valu("v_lshrrev_b32", t1, 1, vG)
    a.valu("v_lshl_add_u32", t0, t1, 10, t0)
    a.valu("v_and_b32", t1, 1, vG)
    a.valu("v_lshl_add_u32", t0, t1, 9, t0)
    a.valu("v_lshl_add_u32", vQW, vQ, 4, t0)
    a.valu("v_lshlrev_b32", t0, 3, vQ)
    a.valu("v_add_u32", vSR, L_ST, t0)
    a.valu("v_mul_u32_u24", t0, 1152, vWv)
    a.valu("v_add_u32", vST, vSR, t0)
    a.valu("v_add_u32", t0, L_X[0], vL[0])
    a.valu("v_lshl_add_u32", vRW, vWv, 13, t0)
    a.valu("v_lshl_add_u32", vRR, vWv, 11, t0)
    a.valu("v_lshl_add_u32", vOS, vWv, 10, vL[0])

    def lds(addr):
        return vL[addr // 65536], addr % 65536

    stmp = [S(76 + i) for i in range(8)]
    stc = [0]

    def soff(val, base=None):
        r = stmp[stc[0] % len(stmp)]
        stc[0] += 1
        if base is None:
            a.salu("s_mov_b32", r, val)
        else:
            a.salu("s_add_u32", r, base, val)
        return r

    Sbuf = [V(16, 32), V(48, 32)]
    Qf = V(80, 16)
    Xf = [V(100, 4), V(104, 4), V(108, 4)]
    Plast = V(112, 16)
    Vr = V(128, 128)
    Kr = A(0, 128)

    def Preg(qt):
        return A(128 + 16 * qt, 16) if qt < 8 else Plast

    def issue_K(it):
        for kt in range(8):
            so = soff(it * 131072 + kt * 4096)
            for ds in range(4):
                a.bload(Kr[(kt * 4 + ds) * 4:(kt * 4 + ds) * 4 + 4], vK, srdK, so, ds * 64, tag=f"K{it}")

    def issue_V(it):
        for ks in range(4):
            for jh in range(2):
                so = soff(it * 131072 + ks * 8192 + jh * 4096)
                for jl in range(4):
                    j = jh * 4 + jl
                    a.bload(Vr[ks * 32 + j * 4: ks * 32 + j * 4 + 4], vV, srdV, so, jl * 256, tag=f"V{it}")

    WR = [V(16 + 16 * i, 16) for i in range(4)]
    T = V(80, 16)

    def acc(qt, t):
        return (A(128 + 16 * qt + 4 * t, 4) if qt < 8 else Plast[4 * t:4 * t + 4])

    def x_dma(c):
        for qt in range(9):
            a.put(__import__("asmlib").I(f"s_add_u32 m0, {sW9K}, {L_X[c & 1] + qt * 1024}", "salu", rd=[sW9K], wr=["m0"]))
            so = soff(qt * 20480 + c * 256, sW64)
            a.bload_lds(vX, srdX, so, tag=f"X{c}")

    def wq_load(ks):
        for j in range(8):
            so = soff((32 * ks + j) * 8192)
            a.bload(WR[ks % 4][2 * j:2 * j + 2], vW, srdWQ, so, tag=f"W{ks}")

    x_dma(0)
    for ks in range(4):
        wq_load(ks)
    x_dma(1)
    for c in range(5):
        a.wait(vm=f"X{c}", lg="all")
        a.barrier()
        if 1 <= c <= 3:
            x_dma(c + 1)
        for ksl in range(4):
            ks = 4 * c + ksl
            a.wait(vm=f"W{ks}")
            w = WR[ks % 4]
            for t in range(4):
                for i in range(4):
                    a.valu("v_perm_b32", T[4 * t + i], w[2 * (2 * i + 1) + (t >> 1)], w[2 * (2 * i) + (t >> 1)],
                           sHI if (t & 1) else sLO)
            if ks + 4 < 20:
                wq_load(ks + 4)
            elif ks == 16:
                issue_K(0)
            elif ks == 17:
                issue_V(0)
            xa = [lds(L_X[c & 1] + (ksl * 9 + qt) * 1024) for qt in range(9)]
            a.dsread(Xf[0], xa[0][0], xa[0][1], tag="x0")
            a.dsread(Xf[1], xa[1][0], xa[1][1], tag="x1")
            for qt in range(9):
                if qt + 2 < 9:
                    a.dsread(Xf[(qt + 2) % 3], xa[qt + 2][0], xa[qt + 2][1], tag=f"x{qt + 2}")
                a.wait(lg=f"x{qt}")
                for t in range(4):
                    a.mfma(acc(qt, t), T[4 * t:4 * t + 4], Xf[qt % 3], acc(qt, t) if ks else 0)
    tmp = V(16, 16)
    pk = V(32, 8)
    for qt in range(9):
        if qt < 8:
            for k in range(16):
                a.valu("v_accvgpr_read_b32", tmp[k], A(128 + 16 * qt + k))
            src = tmp
        else:
            src = Plast
        for u in range(2):
            for rr in range(2):
                r = 2 * u + rr
                a.valu("v_cvt_pk_bf16_f32", pk[4 * u + 2 * rr], src[0 + r], src[4 + r])
                a.valu("v_cvt_pk_bf16_f32", pk[4 * u + 2 * rr + 1], src[8 + r], src[12 + r])
            a.dswrite(vQW, pk[4 * u:4 * u + 4], qt * 4096 + u * 256)
    a.wait(lg="all")
    a.barrier()

    m, l, tt, mc = V(100), V(101), V(102), V(103)
    ml = V(100, 2)
    e0 = V(104, 4)
    for it in range(2):
        a.wait(vm=f"K{it}")
        for qt in range(9):
            Sb = Sbuf[0]
            for ds in range(4):
                qa = lds(L_Q[it] + (qt * 4 + ds) * 1024)
                a.dsread(Qf[4 * ds:4 * ds + 4], qa[0], qa[1], tag=f"q{ds}")
            for ds in range(4):
                a.wait(lg=f"q{ds}")
                for kt in range(8):
                    a.mfma(Sb[4 * kt:4 * kt + 4], Kr[(kt * 4 + ds) * 4:(kt * 4 + ds) * 4 + 4], Qf[4 * ds:4 * ds + 4],
                           Sb[4 * kt:4 * kt + 4] if ds else 0)
            a.valu("v_max3_f32", m, Sb[0], Sb[1], Sb[2])
            for k in range(3, 31, 2):
                a.valu("v_max3_f32", m, m, Sb[k], Sb[k + 1])
            a.valu("v_max_f32", m, m, Sb[31])
            for wh in (32, 16):
                a.valu("v_mov_b32", tt, m)
                a.permlane(wh, m, tt)
                a.valu("v_max_f32", m, m, tt)
            a.valu("v_mul_f32", mc, sC, m)
            for k in range(32):
                a.valu("v_fma_f32", Sb[k], Sb[k], sC, mc, mods={3: "-{}"})
            for k in range(32):
                a.trans("v_exp_f32", Sb[k], Sb[k])
            a.valu("v_add_f32", l, Sb[0], Sb[1])
            for k in range(2, 32):
                a.valu("v_add_f32", l, l, Sb[k])
            P = Preg(qt)
            for k in range(16):
                d = e0[k % 4] if qt < 8 else P[k]
                a.valu("v_cvt_pk_bf16_f32", d, Sb[2 * k], Sb[2 * k + 1])
                if qt < 8:
                    a.valu("v_accvgpr_write_b32", P[k], d)
            for wh in (32, 16):
                a.valu("v_mov_b32", tt, l)
                a.permlane(wh, l, tt)
                a.valu("v_add_f32", l, l, tt)
            a.dswrite(vST, ml, it * 4608 + qt * 128)
        if it == 0:
            issue_K(1)
        if it == 1:
            a.barrier()
        a.wait(vm=f"V{it}")
        Tv = [V(16, 32), V(128, 32), V(160, 32), V(192, 32)]
        for ks in range(4):
            raw = Vr[ks * 32:ks * 32 + 32]
            for t in range(8):
                for i in range(4):
                    a.valu("v_perm_b32", Tv[ks][4 * t + i], raw[4 * (2 * i + 1) + (t >> 1)], raw[4 * (2 * i) + (t >> 1)],
                           sHI if (t & 1) else sLO)
        O = V(48, 32)
        Rr = V(224, 32)
        st = V(80, 8)
        al = V(88, 4)
        mm, LL = V(92), V(93)
        og = V(104, 8)
        pkd = V(100, 4)
        for qt in range(9):
            P = Preg(qt)
            buf = qt & 1
            for ks in range(4):
                for t in range(8):
                    a.mfma(O[4 * t:4 * t + 4], Tv[ks][4 * t:4 * t + 4], P[4 * ks:4 * ks + 4], O[4 * t:4 * t + 4] if ks else 0)
            for t in range(8):
                a.dswrite(vRW, O[4 * t:4 * t + 4], buf * 36864 + t * 1024)
            a.wait(lg="all")
            a.barrier()
            for s in range(4):
                a.dsread(st[2 * s:2 * s + 2], vSR, it * 4608 + (s * 9 + qt) * 128, tag="st")
            for s in range(4):
                for e in range(2):
                    a.dsread(Rr[(s * 2 + e) * 4:(s * 2 + e) * 4 + 4], vRR, buf * 36864 + s * 8192 + e * 1024, tag="rr")
            a.wait(lg="st")
            a.valu("v_max3_f32", mm, st[0], st[2], st[4])
            a.valu("v_max_f32", mm, mm, st[6])
            for s in range(4):
                a.valu("v_sub_f32", al[s], st[2 * s], mm)
                a.valu("v_mul_f32", al[s], sC, al[s])
                a.trans("v_exp_f32", al[s], al[s])
            a.valu("v_mul_f32", LL, al[0], st[1])
            for s in range(1, 4):
                a.valu("v_fma_f32", LL, al[s], st[2 * s + 1], LL)
            a.trans("v_rcp_f32", LL, LL)
            for s in range(4):
                a.valu("v_mul_f32", al[s], al[s], LL)
            a.wait(lg="all")
            for e in range(2):
                for r in range(4):
                    a.valu("v_mul_f32", og[4 * e + r], al[0], Rr[e * 4 + r])
                    for s in range(1, 4):
                        a.valu("v_fma_f32", og[4 * e + r], al[s], Rr[(s * 2 + e) * 4 + r], og[4 * e + r])
            for r in range(4):
                a.valu("v_cvt_pk_bf16_f32", pkd[r], og[r], og[4 + r])
            so = soff(qt * 131072 + it * 4096, sOB)
            a.bstore(pkd, vOS, srdWS, so, tag="ost")
        if it == 0:
            issue_V(1)
    a.label("L_attn_end")
    a.other("s_endpgm")


def gen_oproj(a):
    a.raw(".p2align 8")
    a.raw("oproj_kernel:")
    a.other("s_cmp_ge_u32 s2, 240")
    a.other("s_cbranch_scc1 L_oproj_end")
    load_ptrs(a)
    sW, sP, sRB, sNB = S(3), S(4), S(5), S(6)
    sLO, sHI = S(11), S(12)
    srdO, srdWO, srdOUT = S(44, 4), S(48, 4), S(52, 4)
    a.salu("s_and_b32", S(7), S(2), 7)
    a.salu("s_lshr_b32", S(8), S(2), 3)
    a.salu("s_lshr_b32", sP, S(7), 2)
    a.salu("s_and_b32", S(7), S(7), 3)
    a.salu("s_mul_i32", S(7), S(7), 3)
    a.salu("s_mul_i32", S(9), S(8), 205)
    a.salu("s_lshr_b32", S(9), S(9), 11)
    a.salu("s_add_u32", sRB, S(7), S(9))
    a.salu("s_mul_i32", S(9), S(9), 10)
    a.salu("s_sub_u32", sNB, S(8), S(9))
    a.salu("s_mov_b32", sLO, "0x05040100")
    a.salu("s_mov_b32", sHI, "0x07060302")
    vT = V(0)
    vLane, vQ, vG, vWv = V(1), V(2), V(3), V(4)
    a.valu("v_and_b32", vLane, 63, vT)
    a.valu("v_and_b32", vQ, 15, vT)
    a.valu("v_lshrrev_b32", vG, 4, vLane)
    a.valu("v_lshrrev_b32", vWv, 6, vT)
    a.rfl(sW, vWv)
    a.other("s_waitcnt lgkmcnt(0)")
    a.other("s_cmp_eq_u32 s4, 0")
    a.other("s_cselect_b64 s[64:65], s[24:25], s[34:35]")
    mk_srd(a, 48, S(64), S(65), 4096 * 1280)
    a.salu("s_mul_i32", S(7), sP, OWS_P)
    a.salu("s_add_u32", S(8), S(40), S(7))
    a.salu("s_addc_u32", S(9), S(41), 0)
    mk_srd(a, 44, S(8), S(9), OWS_P)
    mk_srd(a, 52, S(36), S(37), 1152 * 2560)
    sOb, sWb = S(72), S(73)
    a.salu("s_mul_i32", S(7), sRB, 6 * 128)
    a.salu("s_lshl_b32", S(8), sW, 5)
    a.salu("s_add_u32", S(7), S(7), S(8))
    a.salu("s_lshl_b32", sOb, S(7), 10)
    a.salu("s_mul_i32", S(7), sW, 8 * 163840)
    a.salu("s_lshl_b32", S(8), sNB, 7)
    a.salu("s_add_u32", sWb, S(7), S(8))
    vO = [V(5 + i) for i in range(6)]
    vWo = [V(11 + r) for r in range(4)]
    vL16, t0, t1, vRW, vRR, vOUT = V(15), V(16), V(17), V(18), V(19), V(20)
    a.valu("v_lshlrev_b32", vL16, 4, vLane)
    for i in range(6):
        a.valu("v_add_u32", vO[i], i * 131072, vL16)
    a.valu("v_mul_u32_u24", t0, 32 * 1280, vG)
    a.valu("v_lshl_add_u32", t0, vQ, 3, t0)
    for r in range(4):
        a.valu("v_add_u32", vWo[r], 8 * r * 1280, t0)
    a.valu("v_mul_u32_u24", t0, 24576, vWv)
    a.valu("v_add_u32", vRW, t0, vL16)
    a.valu("v_lshl_add_u32", vRR, vWv, 12, vL16)
    vRR2 = V(21)
    a.valu("v_add_u32", vRR2, 49152, vRR)
    a.salu("s_mul_i32", S(7), sRB, 96 * 2560)
    a.salu("s_mul_i32", S(8), sP, 1280)
    a.salu("s_add_u32", S(7), S(7), S(8))
    a.salu("s_lshl_b32", S(8), sNB, 7)
    a.salu("s_add_u32", S(74), S(7), S(8))
    a.valu("v_lshl_add_u32", t0, vWv, 4, vQ)
    a.valu("v_mul_u32_u24", t0, 2560, t0)
    a.valu("v_lshl_add_u32", vOUT, vG, 5, t0)

    stmp = [S(76 + i) for i in range(8)]
    stc = [0]

    def soff(val, base):
        r = stmp[stc[0] % len(stmp)]
        stc[0] += 1
        a.salu("s_add_u32", r, base, val)
        return r

    D = 4
    WR = [V(32 + 16 * i, 16) for i in range(D)]
    OF = [A(96 + 24 * i, 24) for i in range(D)]
    T = V(96, 16)

    def acc(i, t):
        return A((i * 4 + t) * 4, 4)

    def loads(i):
        st = i % D
        so = soff(i * 1024, sOb)
        for k in range(6):
            a.bload(OF[st][4 * k:4 * k + 4], vO[k], srdO, so, tag=f"L{i}")
        so = soff((i >> 2) * 163840 + (i & 3) * 2560, sWb)
        for r in range(4):
            for e in range(2):
                j = 2 * r + e
                a.bload(WR[st][2 * j:2 * j + 2], vWo[r], srdWO, so, e * 1280, tag=f"L{i}")

    for i in range(D):
        loads(i)
    for i in range(32):
        st = i % D
        a.wait(vm=f"L{i}")
        w = WR[st]
        for t in range(4):
            for ii in range(4):
                a.valu("v_perm_b32", T[4 * t + ii], w[2 * (2 * ii + 1) + (t >> 1)], w[2 * (2 * ii) + (t >> 1)],
                       sHI if (t & 1) else sLO)
        for k in range(6):
            for t in range(4):
                a.mfma(acc(k, t), T[4 * t:4 * t + 4], OF[st][4 * k:4 * k + 4], acc(k, t) if i else 0)
        if i + D < 32:
            loads(i + D)
    for k in range(6):
        for t in range(4):
            a.dswrite(vRW, acc(k, t), (k * 4 + t) * 1024)
    a.wait(lg="all")
    a.barrier()
    Rr = V(32, 64)
    pk = V(112, 8)

    def final(extra_lds, extra_out):
        for s in range(4):
            for t in range(4):
                a.dsread(Rr[(s * 4 + t) * 4:(s * 4 + t) * 4 + 4], vRR if s < 2 else vRR2, (s & 1) * 24576 + t * 1024 + extra_lds)
        a.wait(lg="all")
        for t in range(4):
            for r in range(4):
                d = Rr[t * 4 + r]
                for s in range(1, 4):
                    a.valu("v_add_f32", d, d, Rr[(s * 4 + t) * 4 + r])
        for r in range(4):
            a.valu("v_cvt_pk_bf16_f32", pk[2 * r], Rr[0 + r], Rr[4 + r])
            a.valu("v_cvt_pk_bf16_f32", pk[2 * r + 1], Rr[8 + r], Rr[12 + r])
        so = soff(extra_out, S(74))
        a.bstore(pk[0:4], vOUT, srdOUT, so, 0)
        a.bstore(pk[4:8], vOUT, srdOUT, so, 16)

    final(0, 0)
    a.other("s_cmp_ge_u32 s3, 2")
    a.other("s_cbranch_scc1 L_oproj_end")
    a.other("s_nop 4")
    final(4 * 4096, 64 * 2560)
    a.label("L_oproj_end")
    a.other("s_endpgm")


def kd(name, nvgpr, accum, nsgpr=96):
    return f""".amdhsa_kernel {name}
  .amdhsa_next_free_vgpr {nvgpr}
  .amdhsa_next_free_sgpr {nsgpr}
  .amdhsa_accum_offset {accum}
  .amdhsa_group_segment_fixed_size 0
  .amdhsa_kernarg_size 104
  .amdhsa_user_sgpr_count 2
  .amdhsa_user_sgpr_kernarg_segment_ptr 1
  .amdhsa_system_sgpr_workgroup_id_x 1
.end_amdhsa_kernel
"""


def main(out):
    a = Asm()
    gen_attn(a)
    c1 = dict(a.counts)
    a.hist = []
    a.vm = []
    a.lg = []
    gen_oproj(a)
    txt = HEADER
    txt += f"; @launch kernel=attn_kernel grid=(256,1,1) block=(256,1,1) lds={LDS1}\n"
    txt += "; @launch kernel=oproj_kernel grid=(240,1,1) block=(256,1,1) lds=98304\n"
    txt += '.amdgcn_target "amdgcn-amd-amdhsa--gfx950"\n.text\n'
    txt += ".globl attn_kernel\n.type attn_kernel,@function\n.globl oproj_kernel\n.type oproj_kernel,@function\n"
    txt += a.text()
    txt += '.section .rodata,"a"\n.p2align 6\n'
    txt += kd("attn_kernel", 512, 256)
    txt += ".p2align 6\n"
    txt += kd("oproj_kernel", 256 + 192, 256)
    open(out, "w").write(txt)
    print("attn counts", c1, "total", a.counts, "nops", a.n_nops, "bytes", len(txt))


if __name__ == "__main__":
    main(sys.argv[1] if len(sys.argv) > 1 else f"cdna_kernels/{NAME}.s")
```

```python
import os
import struct
import sys
from asmlib import Asm, V, A, S, R, I

NAME = "concat_heads__mha_block_cached__gqa_block_cached__near_ridge"

HEADER = open("cdna_kernels/%s.s.ref" % NAME).read().split("; Override launch geometry")[0]


def f32bits(x):
    return struct.unpack("<I", struct.pack("<f", x))[0]


CSCALE = (128 ** -0.5) * 1.4426950408889634

L_Q = [0, 36864]
L_X = [73728, 110592]
L_ST = 147456
LDS1 = 147456 + 2 * 4608

OWS_P = 72 * 128 * 1024


def load_ptrs(a):
    a.other("s_load_dwordx16 s[16:31], s[0:1], 0")
    a.other("s_load_dwordx8 s[32:39], s[0:1], 64")
    a.other("s_load_dwordx2 s[40:41], s[0:1], 96")


def mk_srd(a, d, base_lo, base_hi, nrec):
    a.salu("s_mov_b32", S(d), base_lo)
    a.salu("s_and_b32", S(d + 1), base_hi, "0xffff")
    a.salu("s_mov_b32", S(d + 2), nrec)
    a.salu("s_mov_b32", S(d + 3), "0x20000")


STAMP = False
ROT = True
RB = int(os.environ.get("RB", "8"))

EXP = os.environ.get("EXP", "")
KPER = 3
VPRE = 11
NTX = ""
NT2 = ""
EARLY = len(sys.argv) > 3 and sys.argv[3] == "early"


def mk_stamper(a, sW, wgs_off):
    if not STAMP:
        return lambda i: None
    srd = S(84, 4)
    a.salu("s_add_u32", S(88), S(40), 64 << 20)
    a.salu("s_addc_u32", S(89), S(41), 0)
    mk_srd(a, 84, S(88), S(89), 1 << 20)
    a.salu("s_lshl_b32", S(88), S(2), 2)
    a.salu("s_add_u32", S(88), S(88), sW)
    a.salu("s_lshl_b32", S(88), S(88), 7)
    a.salu("s_add_u32", S(88), S(88), wgs_off)

    def stamp(i, vz, vt):
        a.other("s_memtime s[90:91]")
        a.wait(lg="all")
        a.valu("v_mov_b32", vz, 0)
        a.valu("v_mov_b32", vt, S(90))
        a.bstore(vt, vz, srd, S(88), i * 4, tag="stamp")
    return stamp


def gen_attn(a):
    a.raw(".p2align 8")
    a.raw("attn_kernel:")
    a.other("s_cmp_ge_u32 s2, 256")
    a.other("s_cbranch_scc1 L_attn_end")
    load_ptrs(a)
    sW, sP, sHP, sB = S(3), S(4), S(5), S(6)
    sC, sLO, sHI = S(10), S(11), S(12)
    srdX, srdK, srdV, srdWQ, srdWS = S(44, 4), S(48, 4), S(52, 4), S(56, 4), S(60, 4)
    a.salu("s_and_b32", S(7), S(2), 7)
    a.salu("s_lshr_b32", S(8), S(2), 3)
    a.salu("s_lshr_b32", sP, S(7), 2)
    a.salu("s_and_b32", S(7), S(7), 3)
    a.salu("s_lshl_b32", S(7), S(7), 2)
    a.salu("s_and_b32", S(9), S(8), 3)
    a.salu("s_add_u32", sHP, S(7), S(9))
    a.salu("s_lshr_b32", sB, S(8), 2)
    a.salu("s_mov_b32", sC, hex(f32bits(CSCALE)))
    a.salu("s_mov_b32", sLO, "0x05040100")
    a.salu("s_mov_b32", sHI, "0x07060302")
    vT = V(0)
    vLane, vQ, vG, vWv = V(1), V(2), V(3), V(4)
    a.valu("v_and_b32", vLane, 63, vT)
    a.valu("v_and_b32", vQ, 15, vT)
    a.valu("v_lshrrev_b32", vG, 4, vLane)
    a.valu("v_lshrrev_b32", vWv, 6, vT)
    a.rfl(sW, vWv)
    a.other("s_waitcnt lgkmcnt(0)")
    a.other("s_cmp_eq_u32 s4, 0")
    for i in range(4):
        a.put(__import__("asmlib").I(f"s_cselect_b64 s[{64 + 2 * i}:{65 + 2 * i}], s[{16 + 2 * i}:{17 + 2 * i}], s[{26 + 2 * i}:{27 + 2 * i}]", "salu"))
    a.salu("s_mul_i32", S(7), sB, 184320)
    a.salu("s_add_u32", S(8), S(64), S(7))
    a.salu("s_addc_u32", S(9), S(65), 0)
    mk_srd(a, 44, S(8), S(9), 184320)
    a.salu("s_lshl_b32", S(7), sB, 5)
    a.salu("s_lshl_b32", S(8), sHP, 1)
    a.salu("s_add_u32", S(7), S(7), S(8))
    a.salu("s_lshl_b32", S(7), S(7), 17)
    a.salu("s_add_u32", S(8), S(66), S(7))
    a.salu("s_addc_u32", S(9), S(67), 0)
    mk_srd(a, 48, S(8), S(9), 262144)
    a.salu("s_add_u32", S(8), S(68), S(7))
    a.salu("s_addc_u32", S(9), S(69), 0)
    mk_srd(a, 52, S(8), S(9), 262144)
    a.salu("s_lshl_b32", S(7), sHP, 9)
    a.salu("s_add_u32", S(8), S(70), S(7))
    a.salu("s_addc_u32", S(9), S(71), 0)
    a.salu("s_sub_u32", S(13), 640 * 8192, S(7))
    mk_srd(a, 56, S(8), S(9), S(13))
    a.salu("s_mul_i32", S(7), sP, OWS_P)
    a.salu("s_add_u32", S(8), S(40), S(7))
    a.salu("s_addc_u32", S(9), S(41), 0)
    mk_srd(a, 60, S(8), S(9), OWS_P)
    sOB, sW64, sW9K = S(72), S(73), S(74)
    a.salu("s_mul_i32", S(7), sB, 9 * 128)
    a.salu("s_lshl_b32", S(8), sHP, 3)
    a.salu("s_add_u32", S(7), S(7), S(8))
    a.salu("s_lshl_b32", sOB, S(7), 10)
    a.salu("s_lshl_b32", sW64, sW, 6)
    a.salu("s_mul_i32", sW9K, sW, 9216)

    vK, vV, vW, vX = V(5), V(6), V(7), V(8)
    vL = [V(9), V(10), V(11)]
    vQW, vST, vSR, vRW, vRR, vOS = V(12), V(13), V(1), V(2), V(3), V(4)
    t0, t1 = V(14), V(15)
    zSR, zRW, zRR, zOS = V(16), V(17), V(18), V(19)
    a.valu("v_lshlrev_b32", t0, 15, vWv)
    a.valu("v_lshl_add_u32", t1, vQ, 8, t0)
    a.valu("v_lshl_add_u32", vK, vG, 4, t1)
    a.valu("v_lshl_add_u32", t1, vG, 10, t0)
    a.valu("v_lshl_add_u32", vV, vQ, 4, t1)
    a.valu("v_lshlrev_b32", t0, 16, vG)
    a.valu("v_lshl_add_u32", t0, vWv, 7, t0)
    a.valu("v_lshl_add_u32", vW, vQ, 3, t0)
    a.valu("v_mul_u32_u24", t0, 1280, vQ)
    a.valu("v_lshl_add_u32", vX, vG, 4, t0)
    a.valu("v_lshlrev_b32", vL[0], 4, vLane)
    a.valu("v_add_u32", vL[1], 65536, vL[0])
    a.valu("v_add_u32", vL[2], 131072, vL[0])
    a.valu("v_lshrrev_b32", t0, 1, vWv)
    a.valu("v_mul_u32_u24", t0, 36864, t0)
    a.valu("v_and_b32", t1, 1, vWv)
    a.valu("v_lshl_add_u32", t0, t1, 11, t0)
    a.valu("v_lshrrev_b32", t1, 1, vG)
    a.valu("v_lshl_add_u32", t0, t1, 10, t0)
    a.valu("v_and_b32", t1, 1, vG)
    a.valu("v_lshl_add_u32", t0, t1, 9, t0)
    a.valu("v_lshl_add_u32", vQW, vQ, 4, t0)
    a.valu("v_lshlrev_b32", t0, 3, vQ)
    a.valu("v_add_u32", zSR, L_ST, t0)
    a.valu("v_mul_u32_u24", t0, 1152, vWv)
    a.valu("v_add_u32", vST, zSR, t0)
    a.valu("v_add_u32", t0, L_X[0], vL[0])
    a.valu("v_lshl_add_u32", zRW, vWv, 13, t0)
    a.valu("v_lshl_add_u32", zRR, vWv, 11, t0)
    a.valu("v_lshl_add_u32", zOS, vWv, 10, vL[0])
    a.valu("v_mov_b32", vSR, zSR)
    a.valu("v_mov_b32", vRW, zRW)
    a.valu("v_mov_b32", vRR, zRR)
    a.valu("v_mov_b32", vOS, zOS)

    def lds(addr):
        return vL[addr // 65536], addr % 65536

    _st = mk_stamper(a, sW, 0)
    stamp = (lambda i: _st(i, t0, t1)) if STAMP else (lambda i: None)

    stmp = [S(76 + i) for i in range(8)]
    stc = [0]

    def soff(val, base=None):
        r = stmp[stc[0] % len(stmp)]
        stc[0] += 1
        if base is None:
            a.salu("s_mov_b32", r, val)
        else:
            a.salu("s_add_u32", r, base, val)
        return r

    Sbuf = [V(16, 32), V(48, 32)]
    Qf = [V(80, 16), V(96, 16)]
    Plast = V(48, 16)
    Vr = V(128, 128)
    Kr = A(0, 128)

    def Preg(qt):
        return A(128 + 16 * qt, 16) if qt < 8 else Plast

    def K_loads(it):
        groups = []
        for kt in range(8):
            for ds in range(4):
                with a.capture() as g:
                    so = soff(it * 131072 + kt * 4096)
                    a.bload(Kr[(kt * 4 + ds) * 4:(kt * 4 + ds) * 4 + 4], vK, srdK, so, ds * 64, tag=f"K{it}", flags=" nt")
                groups.append(g)
        return groups

    def V_loads(it, kss):
        groups = []
        for ks in kss:
            for j in range(8):
                with a.capture() as g:
                    so = soff(it * 131072 + ks * 8192 + (j >> 2) * 4096)
                    a.bload(Vr[ks * 32 + j * 4: ks * 32 + j * 4 + 4], vV, srdV, so, (j & 3) * 256, tag=f"V{it}", flags=" nt")
                groups.append(g)
        return groups

    def merge(main, groups):
        nm, ng = len(main), len(groups)
        gi = 0
        for k, ins in enumerate(main):
            a.put(ins)
            tgt = (k + 1) * ng // nm
            while gi < tgt:
                a.emit_list(groups[gi])
                gi += 1

    DW = 6
    WR = [V(16 + 16 * i, 16) for i in range(4)] + [V(192 + 16 * i, 16) for i in range(4)]
    T = V(80, 16)
    Xf = [V(96, 4), V(100, 4), V(104, 4)]
    Acc8 = V(112, 16)
    LXB = [0, 36864, 73728, 110592, 0]

    def acc(qt, t):
        return (A(128 + 16 * qt + 4 * t, 4) if qt < 8 else Acc8[4 * t:4 * t + 4])

    sRot = S(92)
    a.salu("s_mul_i32", S(7), sB, 3)
    a.salu("s_and_b32", S(8), sHP, 3)
    a.salu("s_mul_i32", S(8), S(8), 5)
    a.salu("s_add_u32", S(7), S(7), S(8))
    a.salu("s_sub_u32", S(8), S(7), 20)
    a.other("s_cmp_ge_u32 s7, 20")
    a.put(I("s_cselect_b32 s92, s8, s7", "salu", rd=[S(7), S(8)], wr=[sRot]))

    def mod20(dst, base, add, mul):
        a.salu("s_add_u32", dst, base, add)
        a.salu("s_sub_u32", S(93), dst, 20)
        a.put(I(f"s_cmp_ge_u32 {dst}, 20", "salu", rd=[dst]))
        a.put(I(f"s_cselect_b32 {dst}, s93, {dst}", "salu", rd=[dst, S(93)], wr=[dst]))
        a.salu("s_mul_i32", dst, dst, mul)

    sRW2 = S(94)
    a.salu("s_add_u32", sRW2, sRot, sW)
    sXo, sWo = S(95), S(96)

    def x_dma(c):
        groups = []
        for qt in range(9):
            with a.capture() as g:
                if qt == 0:
                    mod20(sXo, sRW2, 4 * c, 64)
                a.put(I(f"s_add_u32 m0, {sW9K}, {LXB[c] + qt * 1024}", "salu", rd=[sW9K], wr=["m0"]))
                so = soff(qt * 20480, sXo)
                a.bload_lds(vX, srdX, so, tag=f"X{c}", flags=NTX)
            groups.append(g)
        return groups

    def wq_load(ks):
        groups = []
        for j in range(8):
            with a.capture() as g:
                if j == 0:
                    mod20(sWo, sRot, ks, 262144)
                so = soff(j * 8192, sWo)
                a.bload(WR[ks % DW][2 * j:2 * j + 2], vW, srdWQ, so, tag=f"W{ks}", flags=NTX)
            groups.append(g)
        return groups

    stamp(0)
    for g in x_dma(0):
        a.emit_list(g)
    for g in wq_load(0) + wq_load(1):
        a.emit_list(g)
    kv = K_loads(0)
    kvi = 0
    wq_next = [2]
    xq = {0: x_dma(1), 2: x_dma(2), 4: x_dma(3), 8: x_dma(4)}
    xpend = []
    Tb = [V(80, 16), V(128, 16)]
    Xf = [V(96 + 4 * i, 4) for i in range(4)]

    def perms(ks):
        a.wait(vm=f"W{ks}")
        w = WR[ks % DW]
        for t in range(4):
            for i in range(4):
                a.valu("v_perm_b32", Tb[ks & 1][4 * t + i], w[2 * (2 * i + 1) + (t >> 1)], w[2 * (2 * i) + (t >> 1)],
                       sHI if (t & 1) else sLO)

    perms(0)
    for c in range(5):
        stamp(13 + 2 * c)
        a.wait(vm=f"X{c}", lg="all")
        a.barrier()
        stamp(14 + 2 * c)

        def xread(f):
            xa = lds(LXB[c] + f * 1024)
            a.dsread(Xf[f % 4], xa[0], xa[1], tag=f"x{f}")

        for f in range(3):
            xread(f)
        for ksl in range(4):
            ks = 4 * c + ksl
            bg = []
            if ks in xq:
                xpend = xpend + xq[ks]
            nx = min(len(xpend), 5)
            if not (EXP == "nox" and ks >= 2):
                bg += xpend[:nx]
            xpend = xpend[nx:]
            n = 0
            while wq_next[0] < 20 and wq_next[0] < ks + DW and n < 2:
                if not (EXP == "now" and wq_next[0] >= 6):
                    bg += wq_load(wq_next[0])
                wq_next[0] += 1
                n += 1
            if ks >= 20 - DW:
                bg += kv[kvi:kvi + KPER]
                kvi += KPER
            with a.capture() as main:
                for qt in range(9):
                    f = ksl * 9 + qt
                    if f + 3 < 36:
                        xread(f + 3)
                    a.wait(lg=f"x{f}")
                    for t in range(4):
                        a.mfma(acc(qt, t), Tb[ks & 1][4 * t:4 * t + 4], Xf[f % 4], acc(qt, t) if ks else 0)
            with a.capture() as fill:
                if ks + 1 < 20:
                    perms(ks + 1)
            with a.capture() as L:
                k0 = len(main) // 2
                a.emit_list(main[:k0])
                if fill:
                    a.interleave(main[k0:], fill)
                else:
                    a.emit_list(main[k0:])
            merge(L, bg)
    stamp(1)
    a.barrier()
    V0g = V_loads(0, [0, 1, 2, 3])
    rest = kv[kvi:] + V0g[:VPRE]
    tmp = V(16, 16)
    pk = V(32, 8)
    for qt in range(9):
        if qt < 8:
            for k in range(16):
                a.valu("v_accvgpr_read_b32", tmp[k], A(128 + 16 * qt + k))
            src = tmp
        else:
            src = Acc8
        for u in range(2):
            for rr in range(2):
                r = 2 * u + rr
                a.valu("v_cvt_pk_bf16_f32", pk[4 * u + 2 * rr], src[0 + r], src[4 + r])
                a.valu("v_cvt_pk_bf16_f32", pk[4 * u + 2 * rr + 1], src[8 + r], src[12 + r])
            a.dswrite(vQW, pk[4 * u:4 * u + 4], qt * 4096 + u * 256)
        for g in rest[(qt * len(rest)) // 9:((qt + 1) * len(rest)) // 9]:
            a.emit_list(g)
    a.wait(lg="all")
    a.barrier()
    stamp(2)

    m, l, tt, mc = V(112), V(113), V(114), V(115)
    ml = V(112, 2)
    e0 = V(116, 4)

    def q_reads(it, qt):
        for ds in range(4):
            qa = lds(L_Q[it] + (qt * 4 + ds) * 1024)
            a.dsread(Qf[qt & 1][4 * ds:4 * ds + 4], qa[0], qa[1], tag=f"q{qt}_{ds}")

    def qk_mfma(it, qt):
        Sb = Sbuf[qt & 1]
        for ds in range(4):
            a.wait(lg=f"q{qt}_{ds}")
            for kt in range(8):
                a.mfma(Sb[4 * kt:4 * kt + 4], Kr[(kt * 4 + ds) * 4:(kt * 4 + ds) * 4 + 4], Qf[qt & 1][4 * ds:4 * ds + 4],
                       Sb[4 * kt:4 * kt + 4] if ds else 0)

    def softmax(it, qt):
        Sb = Sbuf[qt & 1]
        a.valu("v_max3_f32", m, Sb[0], Sb[1], Sb[2])
        for k in range(3, 31, 2):
            a.valu("v_max3_f32", m, m, Sb[k], Sb[k + 1])
        a.valu("v_max_f32", m, m, Sb[31])
        for wh in (32, 16):
            a.valu("v_mov_b32", tt, m)
            a.permlane(wh, m, tt)
            a.valu("v_max_f32", m, m, tt)
        a.valu("v_mul_f32", mc, sC, m)
        P = Preg(qt)
        for k in range(16):
            for e in range(2):
                a.valu("v_fma_f32", Sb[2 * k + e], Sb[2 * k + e], sC, mc, mods={3: "-{}"})
            for e in range(2):
                a.trans("v_exp_f32", Sb[2 * k + e], Sb[2 * k + e])
            if k == 0:
                a.valu("v_add_f32", l, Sb[0], Sb[1])
            else:
                a.valu("v_add_f32", l, l, Sb[2 * k])
                a.valu("v_add_f32", l, l, Sb[2 * k + 1])
            d = e0[k % 4] if qt < 8 else P[k]
            a.valu("v_cvt_pk_bf16_f32", d, Sb[2 * k], Sb[2 * k + 1])
            if qt < 8:
                a.valu("v_accvgpr_write_b32", P[k], d)
        for wh in (32, 16):
            a.valu("v_mov_b32", tt, l)
            a.permlane(wh, l, tt)
            a.valu("v_add_f32", l, l, tt)
        a.dswrite(vST, ml, it * 4608 + qt * 128)

    for it in range(2):
        q_reads(it, 0)
        q_reads(it, 1)
        a.wait(vm=f"K{it}")
        stamp(3 + 5 * it)
        bgV = V0g[VPRE:] if it == 0 else V_loads(1, [0, 1, 2, 3])
        qk_mfma(it, 0)
        for qt in range(9):
            with a.capture() as L:
                with a.capture() as main:
                    if qt + 2 < 9:
                        q_reads(it, qt + 2)
                    if qt + 1 < 9:
                        qk_mfma(it, qt + 1)
                with a.capture() as fill:
                    softmax(it, qt)
                if main:
                    a.interleave(main, fill)
                else:
                    a.emit_list(fill)
            merge(L, bgV[(qt * len(bgV)) // 9:((qt + 1) * len(bgV)) // 9])
        stamp(4 + 5 * it)
        if it == 1:
            a.barrier()
        a.wait(vm=f"V{it}")
        stamp(5 + 5 * it)
        Tv = [V(16, 32), V(128, 32), V(160, 32), V(192, 32)]
        for ks in range(4):
            raw = Vr[ks * 32:ks * 32 + 32]
            for t in range(8):
                for i in range(4):
                    a.valu("v_perm_b32", Tv[ks][4 * t + i], raw[4 * (2 * i + 1) + (t >> 1)], raw[4 * (2 * i) + (t >> 1)],
                           sHI if (t & 1) else sLO)
        stamp(6 + 5 * it)
        O = V(80, 32)
        Rr = V(224, 32)
        st = V(64, 8)
        al = V(72, 4)
        mm, LL = V(76), V(77)
        og = V(112, 8)
        pkd = V(120, 4)
        bgK = K_loads(1) if it == 0 else []

        def combine(qt):
            a.wait(lg="st")
            a.valu("v_max3_f32", mm, st[0], st[2], st[4])
            a.valu("v_max_f32", mm, mm, st[6])
            for s_ in range(4):
                a.valu("v_sub_f32", al[s_], st[2 * s_], mm)
                a.valu("v_mul_f32", al[s_], sC, al[s_])
                a.trans("v_exp_f32", al[s_], al[s_])
            a.valu("v_mul_f32", LL, al[0], st[1])
            for s_ in range(1, 4):
                a.valu("v_fma_f32", LL, al[s_], st[2 * s_ + 1], LL)
            a.trans("v_rcp_f32", LL, LL)
            for s_ in range(4):
                a.valu("v_mul_f32", al[s_], al[s_], LL)
            a.wait(lg="rr")
            for e in range(2):
                for r in range(4):
                    a.valu("v_mul_f32", og[4 * e + r], al[0], Rr[e * 4 + r])
                    for s_ in range(1, 4):
                        a.valu("v_fma_f32", og[4 * e + r], al[s_], Rr[(s_ * 2 + e) * 4 + r], og[4 * e + r])
            for r in range(4):
                a.valu("v_cvt_pk_bf16_f32", pkd[r], og[r], og[4 + r])
            a.salu("s_add_u32", S(75), sOB, qt * 131072 + it * 4096)
            a.bstore(pkd, vOS, srdWS, S(75), tag="ost")

        for qt in range(10):
            with a.capture() as L:
                with a.capture() as main:
                    if qt < 9:
                        P = Preg(qt)
                        buf = qt & 1
                        for t in range(8):
                            for ks in range(4):
                                a.mfma(O[4 * t:4 * t + 4], Tv[ks][4 * t:4 * t + 4], P[4 * ks:4 * ks + 4],
                                       O[4 * t:4 * t + 4] if ks else 0)
                            if t >= 1:
                                a.dswrite(vRW, O[4 * (t - 1):4 * (t - 1) + 4], buf * 36864 + (t - 1) * 1024)
                with a.capture() as fill:
                    if qt > 0:
                        combine(qt - 1)
                if main and fill:
                    k0 = len(main) // 2
                    a.emit_list(main[:k0])
                    a.interleave(main[k0:], fill)
                else:
                    a.emit_list(main + fill)
                if qt < 9:
                    a.dswrite(vRW, O[28:32], buf * 36864 + 7 * 1024)
                    a.wait(lg="all")
                    a.barrier()
                    for s_ in range(4):
                        a.dsread(st[2 * s_:2 * s_ + 2], vSR, it * 4608 + (s_ * 9 + qt) * 128, tag="st")
                    for s_ in range(4):
                        for e in range(2):
                            a.dsread(Rr[(s_ * 2 + e) * 4:(s_ * 2 + e) * 4 + 4], vRR, buf * 36864 + s_ * 8192 + e * 1024, tag="rr")
            merge(L, bgK[(qt * len(bgK)) // 10:((qt + 1) * len(bgK)) // 10])
        stamp(7 + 5 * it)
    a.label("L_attn_end")
    a.other("s_endpgm")


def gen_oproj(a):
    a.raw(".p2align 8")
    a.raw("oproj_kernel:")
    a.other("s_cmp_ge_u32 s2, 240")
    a.other("s_cbranch_scc1 L_oproj_end")
    load_ptrs(a)
    sW, sP, sRB, sNB = S(3), S(4), S(5), S(6)
    sLO, sHI = S(11), S(12)
    srdO, srdWO, srdOUT = S(44, 4), S(48, 4), S(52, 4)
    a.salu("s_and_b32", S(7), S(2), 7)
    a.salu("s_lshr_b32", S(8), S(2), 3)
    a.salu("s_lshr_b32", sP, S(7), 2)
    a.salu("s_mul_i32", S(9), S(8), 205)
    a.salu("s_lshr_b32", S(9), S(9), 10)
    a.salu("s_lshr_b32", S(13), S(7), 1)
    a.salu("s_and_b32", S(13), S(13), 1)
    a.salu("s_mul_i32", S(13), S(13), 6)
    a.salu("s_add_u32", sRB, S(13), S(9))
    a.salu("s_mul_i32", S(9), S(9), 5)
    a.salu("s_sub_u32", sNB, S(8), S(9))
    a.salu("s_and_b32", S(13), S(7), 1)
    a.salu("s_mul_i32", S(13), S(13), 5)
    a.salu("s_add_u32", sNB, sNB, S(13))
    a.salu("s_mov_b32", S(75), S(8))
    a.salu("s_mov_b32", sLO, "0x05040100")
    a.salu("s_mov_b32", sHI, "0x07060302")
    vT = V(0)
    vLane, vQ, vG, vWv = V(1), V(2), V(3), V(4)
    a.valu("v_and_b32", vLane, 63, vT)
    a.valu("v_and_b32", vQ, 15, vT)
    a.valu("v_lshrrev_b32", vG, 4, vLane)
    a.valu("v_lshrrev_b32", vWv, 6, vT)
    a.rfl(sW, vWv)
    a.other("s_waitcnt lgkmcnt(0)")
    a.other("s_cmp_eq_u32 s4, 0")
    a.other("s_cselect_b64 s[64:65], s[24:25], s[34:35]")
    mk_srd(a, 48, S(64), S(65), 4096 * 1280)
    a.salu("s_mul_i32", S(7), sP, OWS_P)
    a.salu("s_add_u32", S(8), S(40), S(7))
    a.salu("s_addc_u32", S(9), S(41), 0)
    mk_srd(a, 44, S(8), S(9), OWS_P)
    mk_srd(a, 52, S(36), S(37), 1152 * 2560)
    sOb, sWb = S(72), S(73)
    a.salu("s_mul_i32", S(7), sRB, 6 * 128)
    a.salu("s_lshl_b32", S(8), sW, 5)
    a.salu("s_add_u32", S(7), S(7), S(8))
    a.salu("s_lshl_b32", sOb, S(7), 10)
    a.salu("s_mul_i32", S(7), sW, 8 * 163840)
    a.salu("s_lshl_b32", S(8), sNB, 7)
    a.salu("s_add_u32", sWb, S(7), S(8))
    vO = [V(5 + i) for i in range(6)]
    vWo = [V(11 + r) for r in range(4)]
    vL16, t0, t1, vRW, vRR, vOUT = V(15), V(16), V(17), V(18), V(19), V(20)
    a.valu("v_lshlrev_b32", vL16, 4, vLane)
    for i in range(6):
        a.valu("v_add_u32", vO[i], i * 131072, vL16)
    a.valu("v_mul_u32_u24", t0, 32 * 1280, vG)
    a.valu("v_lshl_add_u32", t0, vQ, 3, t0)
    for r in range(4):
        a.valu("v_add_u32", vWo[r], 8 * r * 1280, t0)
    a.valu("v_mul_u32_u24", t0, 24576, vWv)
    a.valu("v_add_u32", vRW, t0, vL16)
    a.valu("v_lshl_add_u32", vRR, vWv, 12, vL16)
    vRR2 = V(21)
    a.valu("v_add_u32", vRR2, 49152, vRR)
    a.salu("s_mul_i32", S(7), sRB, 96 * 2560)
    a.salu("s_mul_i32", S(8), sP, 1280)
    a.salu("s_add_u32", S(7), S(7), S(8))
    a.salu("s_lshl_b32", S(8), sNB, 7)
    a.salu("s_add_u32", S(74), S(7), S(8))
    a.valu("v_lshl_add_u32", t0, vWv, 4, vQ)
    a.valu("v_mul_u32_u24", t0, 2560, t0)
    a.valu("v_lshl_add_u32", vOUT, vG, 5, t0)

    stmp = [S(76 + i) for i in range(8)]
    stc = [0]

    def soff(val, base):
        r = stmp[stc[0] % len(stmp)]
        stc[0] += 1
        a.salu("s_add_u32", r, base, val)
        return r

    _st = mk_stamper(a, sW, 1 << 18)
    stamp = (lambda i: _st(i, t0, t1)) if STAMP else (lambda i: None)
    stamp(0)
    D = 4
    WR = [V(32 + 16 * i, 16) for i in range(D)]
    OF = [A(96 + 24 * i, 24) for i in range(D)]
    T = V(96, 16)

    def acc(i, t):
        return A((i * 4 + t) * 4, 4)

    def loads(i):
        st = i % D
        sI, sJ = S(92), S(93)
        a.salu("s_add_u32", sI, S(75), i)
        a.salu("s_and_b32", sI, sI, RB - 1)
        a.salu("s_add_u32", sI, sI, i & ~(RB - 1))
        a.salu("s_lshl_b32", sJ, sI, 10)
        so = soff(sJ, sOb)
        for k in range(6):
            if EXP != "noo" or i < 4:
                a.bload(OF[st][4 * k:4 * k + 4], vO[k], srdO, so, tag=f"L{i}", flags=NT2)
        a.salu("s_lshr_b32", sJ, sI, 2)
        a.salu("s_mul_i32", sJ, sJ, 163840)
        a.salu("s_and_b32", sI, sI, 3)
        a.salu("s_mul_i32", sI, sI, 2560)
        a.salu("s_add_u32", sJ, sJ, sI)
        so = soff(sJ, sWb)
        for r in range(4):
            for e in range(2):
                j = 2 * r + e
                if EXP != "nowo" or i < 4:
                    a.bload(WR[st][2 * j:2 * j + 2], vWo[r], srdWO, so, e * 1280, tag=f"L{i}", flags=NT2)

    for i in range(D):
        loads(i)
    for i in range(32):
        st = i % D
        a.wait(vm=f"L{i}")
        w = WR[st]
        for t in range(4):
            for ii in range(4):
                a.valu("v_perm_b32", T[4 * t + ii], w[2 * (2 * ii + 1) + (t >> 1)], w[2 * (2 * ii) + (t >> 1)],
                       sHI if (t & 1) else sLO)
        for k in range(6):
            for t in range(4):
                a.mfma(acc(k, t), T[4 * t:4 * t + 4], OF[st][4 * k:4 * k + 4], acc(k, t) if i else 0)
        if i + D < 32:
            loads(i + D)
    stamp(1)
    for k in range(6):
        for t in range(4):
            a.dswrite(vRW, acc(k, t), (k * 4 + t) * 1024)
    a.wait(lg="all")
    a.barrier()
    Rr = V(32, 64)
    pk = V(112, 8)

    def final(extra_lds, extra_out):
        for s in range(4):
            for t in range(4):
                a.dsread(Rr[(s * 4 + t) * 4:(s * 4 + t) * 4 + 4], vRR if s < 2 else vRR2, (s & 1) * 24576 + t * 1024 + extra_lds)
        a.wait(lg="all")
        for t in range(4):
            for r in range(4):
                d = Rr[t * 4 + r]
                for s in range(1, 4):
                    a.valu("v_add_f32", d, d, Rr[(s * 4 + t) * 4 + r])
        for r in range(4):
            a.valu("v_cvt_pk_bf16_f32", pk[2 * r], Rr[0 + r], Rr[4 + r])
            a.valu("v_cvt_pk_bf16_f32", pk[2 * r + 1], Rr[8 + r], Rr[12 + r])
        so = soff(extra_out, S(74))
        a.bstore(pk[0:4], vOUT, srdOUT, so, 0)
        a.bstore(pk[4:8], vOUT, srdOUT, so, 16)

    final(0, 0)
    stamp(2)
    a.other("s_cmp_ge_u32 s3, 2")
    a.other("s_cbranch_scc1 L_oproj_end")
    a.other("s_nop 4")
    final(4 * 4096, 64 * 2560)
    a.label("L_oproj_end")
    a.other("s_endpgm")


def kd(name, nvgpr, accum, nsgpr=100):
    return f""".amdhsa_kernel {name}
  .amdhsa_next_free_vgpr {nvgpr}
  .amdhsa_next_free_sgpr {nsgpr}
  .amdhsa_accum_offset {accum}
  .amdhsa_group_segment_fixed_size 0
  .amdhsa_kernarg_size 104
  .amdhsa_user_sgpr_count 2
  .amdhsa_user_sgpr_kernarg_segment_ptr 1
  .amdhsa_system_sgpr_workgroup_id_x 1
.end_amdhsa_kernel
"""


def main(out):
    a = Asm()
    gen_attn(a)
    c1 = dict(a.counts)
    a.hist = []
    a.vm = []
    a.lg = []
    gen_oproj(a)
    txt = HEADER
    txt += f"; @launch kernel=attn_kernel grid=(256,1,1) block=(256,1,1) lds={LDS1}\n"
    txt += "; @launch kernel=oproj_kernel grid=(240,1,1) block=(256,1,1) lds=98304\n"
    txt += '.amdgcn_target "amdgcn-amd-amdhsa--gfx950"\n.text\n'
    txt += ".globl attn_kernel\n.type attn_kernel,@function\n.globl oproj_kernel\n.type oproj_kernel,@function\n"
    txt += a.text()
    txt += '.section .rodata,"a"\n.p2align 6\n'
    txt += kd("attn_kernel", 512, 256)
    txt += ".p2align 6\n"
    txt += kd("oproj_kernel", 256 + 192, 256)
    open(out, "w").write(txt)
    print("attn counts", c1, "total", a.counts, "nops", a.n_nops, "bytes", len(txt))


if __name__ == "__main__":
    if len(sys.argv) > 2 and sys.argv[2] == "stamp":
        STAMP = True
    main(sys.argv[1] if len(sys.argv) > 1 else f"cdna_kernels/{NAME}.s")
```

```python
import os
import struct
import sys
from asmlib import Asm, V, A, S, R, I

NAME = "concat_heads__mha_block_cached__gqa_block_cached__near_ridge"
HEADER = open("cdna_kernels/%s.s.ref" % NAME).read().split("; Override launch geometry")[0]
STAMP = False
RB = int(os.environ.get("RB", "8"))
EXP = os.environ.get("EXP", "")
SAFE = True
KVP = int(os.environ.get("KVP", "13"))


def f32bits(x):
    return struct.unpack("<I", struct.pack("<f", x))[0]


CSCALE = (128 ** -0.5) * 1.4426950408889634
OWS_P = 72 * 128 * 1024

L_RING = 0
L_WQR = 3 * 32768
LDS1 = 6 * 25600
NW1 = 9
NST = 5
NOLD = os.environ.get('NOLD')


def load_ptrs(a):
    a.other("s_load_dwordx16 s[16:31], s[0:1], 0")
    a.other("s_load_dwordx8 s[32:39], s[0:1], 64")
    a.other("s_load_dwordx2 s[40:41], s[0:1], 96")


def mk_srd(a, d, base_lo, base_hi, nrec):
    a.salu("s_mov_b32", S(d), base_lo)
    a.salu("s_and_b32", S(d + 1), base_hi, "0xffff")
    a.salu("s_mov_b32", S(d + 2), nrec)
    a.salu("s_mov_b32", S(d + 3), "0x20000")


def mk_stamper(a, sW, wgs_off, nw=4):
    if not STAMP:
        return lambda i, vz, vt, real=False: None
    srd = S(84, 4)
    a.salu("s_add_u32", S(88), S(40), 64 << 20)
    a.salu("s_addc_u32", S(89), S(41), 0)
    mk_srd(a, 84, S(88), S(89), 1 << 20)
    a.salu("s_mul_i32", S(88), S(2), nw)
    a.salu("s_add_u32", S(88), S(88), sW)
    a.salu("s_lshl_b32", S(88), S(88), 7)
    a.salu("s_add_u32", S(88), S(88), wgs_off)

    def stamp(i, vz, vt, real=False):
        a.other("s_memrealtime s[90:91]" if real else "s_memtime s[90:91]")
        a.wait(lg="all")
        a.valu("v_mov_b32", vz, 0)
        a.valu("v_mov_b32", vt, S(90))
        a.bstore(vt, vz, srd, S(88), i * 4, tag="stamp")
    return stamp


_lab = [0]


def newlab(p):
    _lab[0] += 1
    return f"L_{p}{_lab[0]}"


def gen_attn(a):
    a.raw(".p2align 8")
    a.raw("attn_kernel:")
    a.other("s_cmp_ge_u32 s2, 256")
    a.other("s_cbranch_scc1 L_attn_end")
    load_ptrs(a)
    sW, sP, sHP, sB = S(3), S(4), S(5), S(6)
    sC = S(10)
    srdX, srdK, srdV, srdWQ, srdWS = S(44, 4), S(48, 4), S(52, 4), S(56, 4), S(60, 4)
    a.salu("s_and_b32", S(7), S(2), 7)
    a.salu("s_lshr_b32", S(8), S(2), 3)
    a.salu("s_lshr_b32", sP, S(7), 2)
    a.salu("s_and_b32", S(7), S(7), 3)
    a.salu("s_lshl_b32", S(7), S(7), 2)
    a.salu("s_and_b32", S(9), S(8), 3)
    a.salu("s_add_u32", sHP, S(7), S(9))
    a.salu("s_lshr_b32", sB, S(8), 2)
    a.salu("s_mov_b32", sC, hex(f32bits(CSCALE)))
    vT = V(0)
    vLane, vQ, vG, vWv = V(1), V(2), V(3), V(4)
    a.valu("v_and_b32", vLane, 63, vT)
    a.valu("v_and_b32", vQ, 15, vT)
    a.valu("v_lshrrev_b32", vG, 4, vLane)
    a.valu("v_lshrrev_b32", vWv, 6, vT)
    a.rfl(sW, vWv)
    a.other("s_waitcnt lgkmcnt(0)")
    a.other("s_cmp_eq_u32 s4, 0")
    for i in range(4):
        a.put(I(f"s_cselect_b64 s[{64 + 2 * i}:{65 + 2 * i}], s[{16 + 2 * i}:{17 + 2 * i}], s[{26 + 2 * i}:{27 + 2 * i}]", "salu"))
    a.salu("s_mul_i32", S(7), sB, 0 if EXP in ("same", "samex") else 184320)
    a.salu("s_add_u32", S(8), S(64), S(7))
    a.salu("s_addc_u32", S(9), S(65), 0)
    mk_srd(a, 44, S(8), S(9), 184320)
    a.salu("s_lshl_b32", S(7), sB, 5)
    a.salu("s_lshl_b32", S(8), sHP, 1)
    a.salu("s_add_u32", S(7), S(7), S(8))
    a.salu("s_lshl_b32", S(7), S(7), 17)
    a.salu("s_add_u32", S(8), S(66), S(7))
    a.salu("s_addc_u32", S(9), S(67), 0)
    mk_srd(a, 48, S(8), S(9), 262144)
    a.salu("s_add_u32", S(8), S(68), S(7))
    a.salu("s_addc_u32", S(9), S(69), 0)
    mk_srd(a, 52, S(8), S(9), 262144)
    a.salu("s_lshl_b32", S(7), sHP, 9)
    if EXP in ("same", "samew"):
        a.salu("s_mov_b32", S(7), 0)
    a.salu("s_add_u32", S(8), S(70), S(7))
    a.salu("s_addc_u32", S(9), S(71), 0)
    a.salu("s_sub_u32", S(13), 640 * 8192, S(7))
    mk_srd(a, 56, S(8), S(9), S(13))
    a.salu("s_mul_i32", S(7), sP, OWS_P)
    a.salu("s_add_u32", S(8), S(40), S(7))
    a.salu("s_addc_u32", S(9), S(41), 0)
    mk_srd(a, 60, S(8), S(9), OWS_P)
    sOB = S(72)
    a.salu("s_mul_i32", S(7), sB, 9 * 128)
    a.salu("s_lshl_b32", S(8), sHP, 3)
    a.salu("s_add_u32", S(7), S(7), S(8))
    a.salu("s_lshl_b32", sOB, S(7), 10)

    vL16, vL8, t0, t1 = V(5), V(6), V(14), V(15)
    a.valu("v_lshlrev_b32", vL16, 4, vLane)
    a.valu("v_lshlrev_b32", vL8, 3, vLane)
    _st = mk_stamper(a, sW, 0, 16)

    def stamp(i, real=False):
        _st(i, t0, t1, real)

    sT1, sT2, sM0, sRot, sKo, sWc = S(81), S(82), S(83), S(92), S(93), S(74)
    a.salu("s_min_u32", sWc, sW, 7)
    Qf = [V(16, 16), V(32, 16)]
    vXa, vWs0, vWs1, vK0, vK1, vV0, vV1 = V(7), V(8), V(9), V(10), V(11), V(12), V(13)
    vI, t2 = V(152), V(153)
    a.salu("s_mul_i32", sT1, sW, 16 * 1280)
    a.valu("v_mul_u32_u24", t0, 1280, vQ)
    a.valu("v_lshl_add_u32", t0, vG, 4, t0)
    a.valu("v_add_u32", vXa, sT1, t0)
    a.valu("v_lshrrev_b32", t0, 3, vLane)
    a.valu("v_lshlrev_b32", t0, 5, t0)
    a.valu("v_and_b32", t1, 1, vLane)
    a.valu("v_lshl_add_u32", t0, t1, 4, t0)
    a.valu("v_lshrrev_b32", t1, 1, vLane)
    a.valu("v_and_b32", t1, 3, t1)
    a.valu("v_lshl_add_u32", vWs0, t1, 13, t0)
    a.valu("v_xor_b32", vWs1, 32, vWs0)
    a.valu("v_lshl_add_u32", vV0, t1, 8, t0)
    a.valu("v_xor_b32", vV1, 32, vV0)
    a.valu("v_xor_b32", t0, vQ, vG)
    a.valu("v_lshlrev_b32", t0, 4, t0)
    a.valu("v_lshl_add_u32", t0, vG, 8, t0)
    a.salu("s_and_b32", sT1, sWc, 1)
    a.salu("s_lshl_b32", sT1, sT1, 7)
    a.valu("v_xor_b32", vK0, sT1, t0)
    a.valu("v_xor_b32", vK1, 64, vK0)
    vTE, vTO = V(154), V(155)
    a.valu("v_lshrrev_b32", t0, 2, vQ)
    a.valu("v_lshlrev_b32", t0, 5, t0)
    a.valu("v_and_b32", t1, 3, vQ)
    a.valu("v_lshl_add_u32", t0, t1, 3, t0)
    a.valu("v_lshl_add_u32", t0, vG, 10, t0)
    a.valu("v_and_b32", t1, 1, vG)
    a.valu("v_lshlrev_b32", t1, 7, t1)
    a.valu("v_add_u32", vTE, t0, t1)
    a.valu("v_sub_u32", vTO, t0, t1)
    vKb = V(160)
    a.valu("v_xor_b32", t0, vG, vQ)
    a.valu("v_lshlrev_b32", t0, 4, t0)
    a.valu("v_lshl_add_u32", vKb, vQ, 8, t0)
    vQW, vQR, vQW2 = V(164), V(165), V(166)
    a.salu("s_lshl_b32", sT1, sWc, 10)
    a.salu("s_add_u32", sT1, sT1, 65536)
    a.valu("v_lshrrev_b32", t0, 1, vG)
    a.valu("v_lshl_add_u32", t0, t0, 4, vQ)
    a.valu("v_lshlrev_b32", t0, 4, t0)
    a.valu("v_and_b32", t1, 1, vG)
    a.valu("v_lshl_add_u32", t0, t1, 3, t0)
    a.valu("v_add_u32", vQW, sT1, t0)
    a.valu("v_add_u32", vQW2, 65536, vQW)
    a.salu("s_lshl_b32", sT1, sW, 13)
    a.salu("s_add_u32", sT1, sT1, 65536)
    a.valu("v_add_u32", vQR, sT1, vL16)
    a.salu("s_mul_i32", S(7), sB, 3)
    a.salu("s_and_b32", S(8), sHP, 3)
    a.salu("s_mul_i32", S(8), S(8), 5)
    a.salu("s_add_u32", S(7), S(7), S(8))
    a.salu("s_sub_u32", S(8), S(7), 20)
    a.other("s_cmp_ge_u32 s7, 20")
    a.put(I("s_cselect_b32 s92, s8, s7", "salu", rd=[S(7), S(8)], wr=[sRot]))
    sWsrc, sWdst = S(75), S(76)
    a.salu("s_lshr_b32", sT1, sWc, 2)
    a.salu("s_lshl_b32", sT1, sT1, 8)
    a.salu("s_lshr_b32", sT2, sWc, 1)
    a.salu("s_and_b32", sT2, sT2, 1)
    a.salu("s_lshl_b32", sT2, sT2, 15)
    a.salu("s_add_u32", sT1, sT1, sT2)
    a.salu("s_and_b32", sT2, sWc, 1)
    a.salu("s_lshl_b32", sT2, sT2, 17)
    a.salu("s_add_u32", sWsrc, sT1, sT2)
    a.salu("s_lshl_b32", sWdst, sWc, 11)

    def kv_dma(src, slot, tag=None):
        a.salu("s_add_u32", sM0, slot, sWdst)
        a.salu("s_add_u32", sT1, src, sWdst)
        for isV in range(2):
            for n in range(2):
                a.put(I(f"s_add_u32 m0, {sM0}, {L_RING + isV * 16384 + n * 1024}", "salu", rd=[sM0], wr=["m0"]))
                a.salu("s_add_u32", sT2, sT1, n * 1024)
                a.bload_lds((vV0, vV1)[n] if isV else (vK0, vK1)[n], srdV if isV else srdK, sT2, flags=" nt", tag=tag)

    STG = 25600
    NS6 = 6

    def stg(g):
        return ((g + 4) % NS6) * STG

    acc = [[V(48 + 36 * e + 4 * qt, 4) for qt in range(9)] for e in range(2)]
    Xf = [V(120 + 4 * i, 4) for i in range(6)]
    Wf = [[V(16 + 8 * b_ + 4 * e, 4) for e in range(2)] for b_ in range(2)]
    QA = 65536

    def kso(ks):
        a.salu("s_add_u32", sKo, sRot, ks)
        a.salu("s_sub_u32", sT2, sKo, 20)
        a.put(I(f"s_cmp_ge_u32 {sKo}, 20", "salu", rd=[sKo]))
        a.put(I(f"s_cselect_b32 {sKo}, {sT2}, {sKo}", "salu", rd=[sKo, sT2], wr=[sKo]))

    sXd = S(77)
    a.salu("s_lshl_b32", sXd, sW, 10)

    def st_dma(g):
        kso(g)
        a.salu("s_lshl_b32", sT1, sKo, 18)
        a.salu("s_add_u32", sT1, sT1, sWsrc)
        for n in range(2):
            a.put(I(f"s_add_u32 m0, {sWdst}, {stg(g) + n * 1024}", "salu", rd=[sWdst], wr=["m0"]))
            a.salu("s_add_u32", sT2, sT1, n * 65536)
            a.bload_lds((vWs0, vWs1)[n], srdWQ, sT2, tag=f"w{g}")
        a.put(I(f"s_add_u32 m0, {sXd}, {stg(g) + 16384}", "salu", rd=[sXd], wr=["m0"]))
        a.salu("s_lshl_b32", sT2, sKo, 6)
        a.bload_lds(vXa, srdX, sT2, tag=f"w{g}")

    a.salu("s_lshr_b32", sT1, sWc, 2)
    a.salu("s_lshl_b32", sT1, sT1, 13)
    a.salu("s_and_b32", sT2, sWc, 3)
    a.salu("s_lshl_b32", sT2, sT2, 8)
    a.salu("s_add_u32", sT1, sT1, sT2)
    vTr = [[V(144 + 2 * k_ + e) for e in range(2)] for k_ in range(3)]
    vXr = [V(150), V(151), V(156)]
    for k_ in range(3):
        a.salu("s_add_u32", sT2, sT1, k_ * 65536)
        a.valu("v_add_u32", vTr[k_][0], sT2, vTE)
        a.salu("s_add_u32", sT2, sT1, k_ * 65536 + 128)
        a.valu("v_add_u32", vTr[k_][1], sT2, vTO)
        a.valu("v_add_u32", vXr[k_], k_ * 65536, vL16)

    def ldsa(addr, extra):
        k_ = (addr + extra) // 65536
        k0 = addr // 65536
        return k0, addr % 65536

    def wreads(g):
        for e in range(2):
            for h in range(2):
                ad = stg(g) + h * 4096
                k_ = (ad + 8192 + 1024 + 4096) // 65536
                k_ = ad // 65536
                a.put(I(f"ds_read_b64_tr_b16 {Wf[g & 1][e][2 * h:2 * h + 2]}, {vTr[k_][e]} offset:{ad % 65536}",
                        "ds", rd=[vTr[k_][e]], wr=[Wf[g & 1][e][2 * h:2 * h + 2]], tag=f"wf{g}"))

    def xread(F):
        g, qt = divmod(F, 9)
        ad = stg(g) + 16384 + qt * 1024
        a.dsread(Xf[F % 6], vXr[ad // 65536], ad % 65536, tag=f"xf{F}")

    stamp(0)
    stamp(28, True)
    for g in range(NS6 - 1):
        st_dma(g)
    a.wait(vm=["w0"])
    a.barrier()
    sAct = S(78)
    labq = newlab("q8a")
    a.other("s_cmp_ge_u32 s3, 8")
    a.other(f"s_cbranch_scc1 {labq}")
    wreads(0)
    for F in range(5):
        xread(F)
    a.raw(labq + ":")
    for g in range(20):
        a.wait(vm=[f"w{min(g + 1, 19)}"])
        a.barrier()
        if g >= 1 and g % 2 == 0 and EXP == "steps":
            stamp(9 + g // 2)
        if g + NS6 - 1 < 20:
            st_dma(g + NS6 - 1)
        if g in (16, 17):
            c = g - 16
            a.salu("s_mov_b32", S(95), c * 16384)
            a.salu("s_mov_b32", S(96), c * 32768)
            kv_dma(S(95), S(96), tag="kv")
        labq = newlab("q8")
        a.other("s_cmp_ge_u32 s3, 8")
        a.other(f"s_cbranch_scc1 {labq}")
        if g + 1 < 20:
            wreads(g + 1)
        for qt in range(9):
            F = 9 * g + qt
            if F + 5 < 180:
                xread(F + 5)
            a.wait(lg=[f"xf{F}", f"wf{g}"])
            for e in range(2):
                a.mfma(acc[e][qt], Wf[g & 1][e], Xf[F % 6], acc[e][qt] if g else 0)
        a.raw(labq + ":")
    a.wait(lg="all")
    a.barrier()
    labq = newlab("q8b")
    a.other("s_cmp_ge_u32 s3, 8")
    a.other(f"s_cbranch_scc1 {labq}")
    a.other("s_nop 7")
    pq = V(120, 4)
    for qt in range(9):
        for e in range(2):
            p2 = pq[2 * e:2 * e + 2]
            a.valu("v_cvt_pk_bf16_f32", p2[0], acc[e][qt][0], acc[e][qt][1])
            a.valu("v_cvt_pk_bf16_f32", p2[1], acc[e][qt][2], acc[e][qt][3])
            a.dswrite(vQW if qt < 8 else vQW2, p2, (qt % 8) * 8192 + e * 512)
    a.raw(labq + ":")
    a.wait(lg="all")
    a.barrier()
    a.hist = []
    for hd in range(2):
        for s_ in range(4):
            a.dsread(Qf[hd][4 * s_:4 * s_ + 4], vQR, (hd * 4 + s_) * 1024)
    a.wait(lg="all")
    stamp(1)

    O = V(48, 32)
    Sb = V(80, 16)
    P = V(96, 8)
    Kf = [V(104, 16), V(120, 16)]
    Vf = [V(136 + 4 * i, 4) for i in range(2)] + [V(104 + 4 * i, 4) for i in range(8)]
    NVF = 10
    m, l, mx, tt, al, mc = V(152), V(153), V(7), V(8), V(9), V(5)
    vKx = [V(160 + i) for i in range(4)]
    Lac, Ones = V(164, 4), V(144, 4)
    vVa = [V(156), V(157)]
    for i in range(3, -1, -1):
        a.valu("v_xor_b32", vKx[i], i * 64, vKb)
    for i in range(4):
        a.valu("v_mov_b32", Ones[i], "0x3f803f80")
    a.valu("v_add_u32", vVa[0], L_RING + 16384, vTE)
    a.valu("v_add_u32", vVa[1], L_RING + 16384, vTO)
    vOSt = V(158)
    a.valu("v_lshlrev_b32", vOSt, 1, vL8)
    Qw = Qf[0]
    sGC, sSl, sIt, sCh, sD1, sD2 = S(79), S(80), S(95), S(96), S(97), S(94)
    a.salu("s_mov_b32", sGC, 0)
    a.salu("s_mov_b32", sSl, 0)
    a.salu("s_mov_b32", sIt, 0)
    a.vm = []

    def stampA(i):
        if not STAMP:
            return
        a.salu("s_lshl_b32", S(99), sIt, 4)
        a.salu("s_add_u32", S(88), S(88), S(99))
        stamp(i)
        a.salu("s_sub_u32", S(88), S(88), S(99))

    def nextslot(d, s_, n):
        a.salu("s_add_u32", d, s_, n * 32768)
        a.salu("s_sub_u32", sT2, d, 3 * 32768)
        a.put(I(f"s_cmp_ge_u32 {d}, {3 * 32768}", "salu", rd=[d]))
        a.put(I(f"s_cselect_b32 {d}, {sT2}, {d}", "salu", rd=[d, sT2], wr=[d]))

    lab_item = newlab("item")
    a.label(lab_item)
    a.valu("v_mov_b32", m, hex(f32bits(-1e30)))
    for k in range(4):
        a.valu("v_mov_b32", Lac[k], 0)
    for k in range(32):
        a.valu("v_mov_b32", O[k], 0)
    a.salu("s_mov_b32", sCh, 0)
    lab_ch = newlab("chunk")
    a.label(lab_ch)
    a.other("s_waitcnt vmcnt(4) lgkmcnt(0)")
    a.barrier()

    def kread(kt):
        for ds in range(4):
            a.dsread(Kf[kt & 1][4 * ds:4 * ds + 4], vKx[ds], kt * 4096, tag=f"k{kt}")

    kread(0)
    kread(1)
    labskip = newlab("nodma")
    a.other("s_cmp_ge_u32 s3, 8")
    a.other(f"s_cbranch_scc1 {labskip}")
    a.salu("s_add_u32", sD1, sGC, 2)
    a.salu("s_lshl_b32", sD1, sD1, 14)
    nextslot(sD2, sSl, 2)
    kv_dma(sD1, sD2)
    a.raw(labskip + ":")
    for kt in range(4):
        a.wait(lg=f"k{kt}")
        for ds in range(4):
            a.mfma(Sb[4 * kt:4 * kt + 4], Kf[kt & 1][4 * ds:4 * ds + 4], Qw[4 * ds:4 * ds + 4],
                   Sb[4 * kt:4 * kt + 4] if ds else 0)
        if kt + 2 < 4:
            kread(kt + 2)

    def vread(f):
        ks, dt = f >> 3, f & 7
        for h in range(2):
            a.put(I(f"ds_read_b64_tr_b16 {Vf[f % NVF][2 * h:2 * h + 2]}, {vVa[dt & 1]} offset:{(ks * 2 + h) * 4096 + dt * 128}", "ds",
                    rd=[vVa[dt & 1]], wr=[Vf[f % NVF][2 * h:2 * h + 2]], tag=f"v{f}"))

    for f in range(NVF - 1):
        vread(f)
    a.valu("v_max3_f32", mx, Sb[0], Sb[1], Sb[2])
    for k in range(3, 15, 2):
        a.valu("v_max3_f32", mx, mx, Sb[k], Sb[k + 1])
    a.valu("v_max3_f32", mx, mx, Sb[15], m)
    for wh in (32, 16):
        a.valu("v_mov_b32", tt, mx)
        a.permlane(wh, mx, tt)
        a.valu("v_max_f32", mx, mx, tt)
    a.valu("v_sub_f32", al, m, mx)
    a.valu("v_mul_f32", al, sC, al)
    a.trans("v_exp_f32", al, al)
    a.valu("v_mul_f32", mc, sC, mx)
    a.valu("v_mov_b32", m, mx)
    a.valu("v_mul_f32", Lac[0], Lac[0], al)
    for k in range(8):
        for e in range(2):
            a.valu("v_fma_f32", Sb[2 * k + e], Sb[2 * k + e], sC, mc, mods={3: "-{}"})
        for e in range(2):
            a.trans("v_exp_f32", Sb[2 * k + e], Sb[2 * k + e])
        a.valu("v_cvt_pk_bf16_f32", P[k], Sb[2 * k], Sb[2 * k + 1])
    for k in range(32):
        a.valu("v_mul_f32", O[k], O[k], al)
    for f in range(16):
        if f + NVF - 1 < 16:
            vread(f + NVF - 1)
        if f % 2 == 0:
            a.wait(lg=f"v{f + 1}")
        ks, dt = f >> 3, f & 7
        if dt == 0:
            a.mfma(Lac, Ones, P[4 * ks:4 * ks + 4], Lac)
        a.mfma(O[4 * dt:4 * dt + 4], Vf[f % NVF], P[4 * ks:4 * ks + 4], O[4 * dt:4 * dt + 4])
    nextslot(sD1, sSl, 1)
    a.salu("s_sub_u32", sD2, sD1, sSl)
    a.salu("s_mov_b32", sSl, sD1)
    for r_ in vKx + vVa:
        a.valu("v_add_u32", r_, sD2, r_)
    a.salu("s_add_u32", sGC, sGC, 1)
    a.salu("s_add_u32", sCh, sCh, 1)
    a.other("s_nop 7")
    a.other(f"s_cmp_lt_u32 s{sCh.n}, 8")
    a.other(f"s_cbranch_scc1 {lab_ch}")
    a.other("s_nop 7")
    a.hist = []
    pk = V(104, 16)
    a.trans("v_rcp_f32", al, Lac[0])
    for k in range(32):
        a.valu("v_mul_f32", O[k], O[k], al)
    for j in range(4):
        for e in range(4):
            dt = 2 * j + (e >> 1)
            r = 2 * (e & 1)
            a.valu("v_cvt_pk_bf16_f32", pk[4 * j + e], O[4 * dt + r], O[4 * dt + r + 1])
    a.salu("s_lshl_b32", sT1, sW, 17)
    a.salu("s_add_u32", sT1, sT1, sOB)
    a.salu("s_lshl_b32", sT2, sIt, 12)
    a.salu("s_add_u32", sT1, sT1, sT2)
    for j in range(4):
        a.bstore(pk[4 * j:4 * j + 4], vOSt, srdWS, sT1, j * 1024)
    for k in range(16):
        a.valu("v_mov_b32", Qw[k], Qf[1][k])
    stampA(4)
    a.salu("s_add_u32", sIt, sIt, 1)
    a.other(f"s_cmp_lt_u32 s{sIt.n}, 2")
    a.other(f"s_cbranch_scc1 {lab_item}")
    stamp(29, True)
    a.label("L_attn_end")
    a.other("s_endpgm")


def gen_oproj(a):
    a.raw(".p2align 8")
    a.raw("oproj_kernel:")
    a.other("s_cmp_ge_u32 s2, 240")
    a.other("s_cbranch_scc1 L_oproj_end")
    load_ptrs(a)
    sW, sP, sRB, sNB = S(3), S(4), S(5), S(6)
    sLO, sHI = S(11), S(12)
    srdO, srdWO, srdOUT = S(44, 4), S(48, 4), S(52, 4)
    a.salu("s_and_b32", S(7), S(2), 7)
    a.salu("s_lshr_b32", S(8), S(2), 3)
    a.salu("s_lshr_b32", sP, S(7), 2)
    a.salu("s_mul_i32", S(9), S(8), 205)
    a.salu("s_lshr_b32", S(9), S(9), 10)
    a.salu("s_lshr_b32", S(13), S(7), 1)
    a.salu("s_and_b32", S(13), S(13), 1)
    a.salu("s_mul_i32", S(13), S(13), 6)
    a.salu("s_add_u32", sRB, S(13), S(9))
    a.salu("s_mul_i32", S(9), S(9), 5)
    a.salu("s_sub_u32", sNB, S(8), S(9))
    a.salu("s_and_b32", S(13), S(7), 1)
    a.salu("s_mul_i32", S(13), S(13), 5)
    a.salu("s_add_u32", sNB, sNB, S(13))
    a.salu("s_mov_b32", S(75), S(8))
    a.salu("s_mov_b32", sLO, "0x05040100")
    a.salu("s_mov_b32", sHI, "0x07060302")
    vT = V(0)
    vLane, vQ, vG, vWv = V(1), V(2), V(3), V(4)
    a.valu("v_and_b32", vLane, 63, vT)
    a.valu("v_and_b32", vQ, 15, vT)
    a.valu("v_lshrrev_b32", vG, 4, vLane)
    a.valu("v_lshrrev_b32", vWv, 6, vT)
    a.rfl(sW, vWv)
    a.other("s_waitcnt lgkmcnt(0)")
    a.other("s_cmp_eq_u32 s4, 0")
    a.other("s_cselect_b64 s[64:65], s[24:25], s[34:35]")
    mk_srd(a, 48, S(64), S(65), 4096 * 1280)
    a.salu("s_mul_i32", S(7), sP, OWS_P)
    a.salu("s_add_u32", S(8), S(40), S(7))
    a.salu("s_addc_u32", S(9), S(41), 0)
    mk_srd(a, 44, S(8), S(9), OWS_P)
    mk_srd(a, 52, S(36), S(37), 1152 * 2560)
    sOb, sWb = S(72), S(73)
    a.salu("s_mul_i32", S(7), sRB, 6 * 128)
    a.salu("s_lshl_b32", S(8), sW, 5)
    a.salu("s_add_u32", S(7), S(7), S(8))
    a.salu("s_lshl_b32", sOb, S(7), 10)
    a.salu("s_mul_i32", S(7), sW, 32 * 40960)
    a.salu("s_lshl_b32", S(8), sNB, 7)
    a.salu("s_add_u32", sWb, S(7), S(8))
    vO = [V(5 + i) for i in range(6)]
    vWo = [V(11), V(12)]
    vL16, t0, t1, vRW, vRR, vOUT = V(15), V(16), V(17), V(18), V(19), V(20)
    a.valu("v_lshlrev_b32", vL16, 4, vLane)
    for i in range(6):
        a.valu("v_add_u32", vO[i], i * 131072, vL16)
    a.valu("v_mul_u32_u24", t0, 4 * 1280, vG)
    a.valu("v_lshl_add_u32", vWo[0], vQ, 3, t0)
    a.valu("v_add_u32", vWo[1], 16 * 1280, vWo[0])
    a.valu("v_mul_u32_u24", t0, 24576, vWv)
    a.valu("v_add_u32", vRW, t0, vL16)
    a.valu("v_lshl_add_u32", vRR, vWv, 12, vL16)
    vRR2 = V(21)
    a.valu("v_add_u32", vRR2, 49152, vRR)
    a.salu("s_mul_i32", S(7), sRB, 96 * 2560)
    a.salu("s_mul_i32", S(8), sP, 1280)
    a.salu("s_add_u32", S(7), S(7), S(8))
    a.salu("s_lshl_b32", S(8), sNB, 7)
    a.salu("s_add_u32", S(74), S(7), S(8))
    a.valu("v_lshl_add_u32", t0, vWv, 4, vQ)
    a.valu("v_mul_u32_u24", t0, 2560, t0)
    a.valu("v_lshl_add_u32", vOUT, vG, 5, t0)

    stmp = [S(76 + i) for i in range(8)]
    stc = [0]

    def soff(val, base):
        r = stmp[stc[0] % len(stmp)]
        stc[0] += 1
        a.salu("s_add_u32", r, base, val)
        return r

    _st = mk_stamper(a, sW, 1 << 18)

    def stamp(i, real=False):
        _st(i, t0, t1, real)

    stamp(0)
    stamp(28, True)
    D = 4
    WR = [V(32 + 16 * i, 16) for i in range(D)]
    OF = [A(96 + 24 * i, 24) for i in range(D)]
    T = V(96, 16)

    def acc(i, t):
        return A((i * 4 + t) * 4, 4)

    def loads(i):
        st = i % D
        sI, sJ = S(92), S(93)
        a.salu("s_add_u32", sI, S(75), i)
        a.salu("s_and_b32", sI, sI, RB - 1)
        a.salu("s_add_u32", sI, sI, i & ~(RB - 1))
        a.salu("s_lshl_b32", sJ, sI, 10)
        so = soff(sJ, sOb)
        for k in range(6):
            a.bload(OF[st][4 * k:4 * k + 4], vO[k], srdO, so, tag=f"L{i}")
        a.salu("s_mul_i32", sJ, sI, 40960)
        so = soff(sJ, sWb)
        for e in range(8):
            a.bload(WR[st][2 * e:2 * e + 2], vWo[e >> 2], srdWO, so, (e & 3) * 1280, tag=f"L{i}")

    for i in range(D):
        loads(i)
    for i in range(32):
        st = i % D
        a.wait(vm=f"L{i}")
        w = WR[st]
        for t in range(4):
            for ii in range(4):
                a.valu("v_perm_b32", T[4 * t + ii], w[2 * (2 * ii + 1) + (t >> 1)], w[2 * (2 * ii) + (t >> 1)],
                       sHI if (t & 1) else sLO)
        for k in range(6):
            for t in range(4):
                a.mfma(acc(k, t), T[4 * t:4 * t + 4], OF[st][4 * k:4 * k + 4], acc(k, t) if i else 0)
        if i + D < 32:
            loads(i + D)
    stamp(1)
    for k in range(6):
        for t in range(4):
            a.dswrite(vRW, acc(k, t), (k * 4 + t) * 1024)
    a.wait(lg="all")
    a.barrier()
    Rr = V(32, 64)
    pk = V(112, 8)

    def final(extra_lds, extra_out):
        for s in range(4):
            for t in range(4):
                a.dsread(Rr[(s * 4 + t) * 4:(s * 4 + t) * 4 + 4], vRR if s < 2 else vRR2, (s & 1) * 24576 + t * 1024 + extra_lds)
        a.wait(lg="all")
        for t in range(4):
            for r in range(4):
                d = Rr[t * 4 + r]
                for s in range(1, 4):
                    a.valu("v_add_f32", d, d, Rr[(s * 4 + t) * 4 + r])
        for r in range(4):
            a.valu("v_cvt_pk_bf16_f32", pk[2 * r], Rr[0 + r], Rr[4 + r])
            a.valu("v_cvt_pk_bf16_f32", pk[2 * r + 1], Rr[8 + r], Rr[12 + r])
        so = soff(extra_out, S(74))
        a.bstore(pk[0:4], vOUT, srdOUT, so, 0)
        a.bstore(pk[4:8], vOUT, srdOUT, so, 16)

    final(0, 0)
    stamp(2)
    stamp(29, True)
    a.other("s_cmp_ge_u32 s3, 2")
    a.other("s_cbranch_scc1 L_oproj_end")
    a.other("s_nop 4")
    final(4 * 4096, 64 * 2560)
    a.label("L_oproj_end")
    a.other("s_endpgm")


def kd(name, nvgpr, accum, nsgpr=100):
    return f""".amdhsa_kernel {name}
  .amdhsa_next_free_vgpr {nvgpr}
  .amdhsa_next_free_sgpr {nsgpr}
  .amdhsa_accum_offset {accum}
  .amdhsa_group_segment_fixed_size 0
  .amdhsa_kernarg_size 104
  .amdhsa_user_sgpr_count 2
  .amdhsa_user_sgpr_kernarg_segment_ptr 1
  .amdhsa_system_sgpr_workgroup_id_x 1
.end_amdhsa_kernel
"""


def main(out):
    a = Asm()
    gen_attn(a)
    c1 = dict(a.counts)
    a.hist = []
    a.vm = []
    a.lg = []
    gen_oproj(a)
    txt = HEADER
    txt += f"; @launch kernel=attn_kernel grid=(256,1,1) block=(576,1,1) lds={LDS1}\n"
    txt += "; @launch kernel=oproj_kernel grid=(240,1,1) block=(256,1,1) lds=98304\n"
    txt += '.amdgcn_target "amdgcn-amd-amdhsa--gfx950"\n.text\n'
    txt += ".globl attn_kernel\n.type attn_kernel,@function\n.globl oproj_kernel\n.type oproj_kernel,@function\n"
    txt += a.text()
    txt += '.section .rodata,"a"\n.p2align 6\n'
    txt += kd("attn_kernel", 168, 168)
    txt += ".p2align 6\n"
    txt += kd("oproj_kernel", 256 + 192, 256)
    open(out, "w").write(txt)
    print("attn counts", c1, "nops", a.n_nops, "bytes", len(txt))


if __name__ == "__main__":
    if len(sys.argv) > 2 and sys.argv[2] == "stamp":
        STAMP = True
    main(sys.argv[1] if len(sys.argv) > 1 else f"cdna_kernels/{NAME}.s")
```

```python
import os
import struct
import sys
from asmlib import Asm, V, A, S, R, I

NAME = "concat_heads__mha_block_cached__gqa_block_cached__near_ridge"
HEADER = open("cdna_kernels/%s.s.ref" % NAME).read().split("; Override launch geometry")[0]
STAMP = False
RB = int(os.environ.get("RB", "8"))
EXP = os.environ.get("EXP", "")
SAFE = True
KVP = int(os.environ.get("KVP", "13"))


def f32bits(x):
    return struct.unpack("<I", struct.pack("<f", x))[0]


CSCALE = (128 ** -0.5) * 1.4426950408889634
OWS_P = 72 * 128 * 1024

L_RING = 0
L_WQR = 3 * 32768
LDS1 = 6 * 25600
NW1 = 9
NST = 5
OSF = os.environ.get('OSF', '')
D2 = int(os.environ.get('D2', '5'))
NOLD = os.environ.get('NOLD')


def load_ptrs(a):
    a.other("s_load_dwordx16 s[16:31], s[0:1], 0")
    a.other("s_load_dwordx8 s[32:39], s[0:1], 64")
    a.other("s_load_dwordx2 s[40:41], s[0:1], 96")


def mk_srd(a, d, base_lo, base_hi, nrec):
    a.salu("s_mov_b32", S(d), base_lo)
    a.salu("s_and_b32", S(d + 1), base_hi, "0xffff")
    a.salu("s_mov_b32", S(d + 2), nrec)
    a.salu("s_mov_b32", S(d + 3), "0x20000")


def mk_stamper(a, sW, wgs_off, nw=4):
    if not STAMP:
        return lambda i, vz, vt, real=False: None
    srd = S(84, 4)
    a.salu("s_add_u32", S(88), S(40), 64 << 20)
    a.salu("s_addc_u32", S(89), S(41), 0)
    mk_srd(a, 84, S(88), S(89), 1 << 20)
    a.salu("s_mul_i32", S(88), S(2), nw)
    a.salu("s_add_u32", S(88), S(88), sW)
    a.salu("s_lshl_b32", S(88), S(88), 7)
    a.salu("s_add_u32", S(88), S(88), wgs_off)

    def stamp(i, vz, vt, real=False):
        a.other("s_memrealtime s[90:91]" if real else "s_memtime s[90:91]")
        a.wait(lg="all")
        a.valu("v_mov_b32", vz, 0)
        a.valu("v_mov_b32", vt, S(90))
        a.bstore(vt, vz, srd, S(88), i * 4, tag="stamp")
    return stamp


_lab = [0]


def newlab(p):
    _lab[0] += 1
    return f"L_{p}{_lab[0]}"


def gen_attn(a):
    a.raw(".p2align 8")
    a.raw("attn_kernel:")
    a.other("s_cmp_ge_u32 s2, 256")
    a.other("s_cbranch_scc1 L_attn_end")
    load_ptrs(a)
    sW, sP, sHP, sB = S(3), S(4), S(5), S(6)
    sC = S(10)
    srdX, srdK, srdV, srdWQ, srdWS = S(44, 4), S(48, 4), S(52, 4), S(56, 4), S(60, 4)
    a.salu("s_and_b32", S(7), S(2), 7)
    a.salu("s_lshr_b32", S(8), S(2), 3)
    a.salu("s_lshr_b32", sP, S(7), 2)
    a.salu("s_and_b32", S(7), S(7), 3)
    a.salu("s_lshl_b32", S(7), S(7), 2)
    a.salu("s_and_b32", S(9), S(8), 3)
    a.salu("s_add_u32", sHP, S(7), S(9))
    a.salu("s_lshr_b32", sB, S(8), 2)
    a.salu("s_mov_b32", sC, hex(f32bits(CSCALE)))
    vT = V(0)
    vLane, vQ, vG, vWv = V(1), V(2), V(3), V(4)
    a.valu("v_and_b32", vLane, 63, vT)
    a.valu("v_and_b32", vQ, 15, vT)
    a.valu("v_lshrrev_b32", vG, 4, vLane)
    a.valu("v_lshrrev_b32", vWv, 6, vT)
    a.rfl(sW, vWv)
    a.other("s_waitcnt lgkmcnt(0)")
    a.other("s_cmp_eq_u32 s4, 0")
    for i in range(4):
        a.put(I(f"s_cselect_b64 s[{64 + 2 * i}:{65 + 2 * i}], s[{16 + 2 * i}:{17 + 2 * i}], s[{26 + 2 * i}:{27 + 2 * i}]", "salu"))
    a.salu("s_mul_i32", S(7), sB, 0 if EXP in ("same", "samex") else 184320)
    a.salu("s_add_u32", S(8), S(64), S(7))
    a.salu("s_addc_u32", S(9), S(65), 0)
    mk_srd(a, 44, S(8), S(9), 184320)
    a.salu("s_lshl_b32", S(7), sB, 5)
    a.salu("s_lshl_b32", S(8), sHP, 1)
    a.salu("s_add_u32", S(7), S(7), S(8))
    a.salu("s_lshl_b32", S(7), S(7), 17)
    a.salu("s_add_u32", S(8), S(66), S(7))
    a.salu("s_addc_u32", S(9), S(67), 0)
    mk_srd(a, 48, S(8), S(9), 262144)
    a.salu("s_add_u32", S(8), S(68), S(7))
    a.salu("s_addc_u32", S(9), S(69), 0)
    mk_srd(a, 52, S(8), S(9), 262144)
    a.salu("s_lshl_b32", S(7), sHP, 9)
    if EXP in ("same", "samew"):
        a.salu("s_mov_b32", S(7), 0)
    a.salu("s_add_u32", S(8), S(70), S(7))
    a.salu("s_addc_u32", S(9), S(71), 0)
    a.salu("s_sub_u32", S(13), 640 * 8192, S(7))
    mk_srd(a, 56, S(8), S(9), S(13))
    a.salu("s_mul_i32", S(7), sP, OWS_P)
    a.salu("s_add_u32", S(8), S(40), S(7))
    a.salu("s_addc_u32", S(9), S(41), 0)
    mk_srd(a, 60, S(8), S(9), OWS_P)
    sOB = S(72)
    a.salu("s_mul_i32", S(7), sB, 9 * 128)
    a.salu("s_lshl_b32", S(8), sHP, 3)
    a.salu("s_add_u32", S(7), S(7), S(8))
    a.salu("s_lshl_b32", sOB, S(7), 10)

    vL16, vL8, t0, t1 = V(5), V(6), V(14), V(15)
    a.valu("v_lshlrev_b32", vL16, 4, vLane)
    a.valu("v_lshlrev_b32", vL8, 3, vLane)
    _st = mk_stamper(a, sW, 0, 16)

    def stamp(i, real=False):
        _st(i, t0, t1, real)

    sT1, sT2, sM0, sRot, sKo, sWc = S(81), S(82), S(83), S(92), S(93), S(74)
    a.salu("s_min_u32", sWc, sW, 7)
    Qf = [V(16, 16), V(32, 16)]
    vXa, vWs0, vWs1, vK0, vK1, vV0, vV1 = V(7), V(8), V(9), V(10), V(11), V(12), V(13)
    vI, t2 = V(152), V(153)
    a.salu("s_mul_i32", sT1, sW, 16 * 1280)
    a.valu("v_mul_u32_u24", t0, 1280, vQ)
    a.valu("v_lshl_add_u32", t0, vG, 4, t0)
    a.valu("v_add_u32", vXa, sT1, t0)
    a.valu("v_lshrrev_b32", t0, 3, vLane)
    a.valu("v_lshlrev_b32", t0, 5, t0)
    a.valu("v_and_b32", t1, 1, vLane)
    a.valu("v_lshl_add_u32", t0, t1, 4, t0)
    a.valu("v_lshrrev_b32", t1, 1, vLane)
    a.valu("v_and_b32", t1, 3, t1)
    a.valu("v_lshl_add_u32", vWs0, t1, 13, t0)
    a.valu("v_xor_b32", vWs1, 32, vWs0)
    a.valu("v_lshl_add_u32", vV0, t1, 8, t0)
    a.valu("v_xor_b32", vV1, 32, vV0)
    a.valu("v_xor_b32", t0, vQ, vG)
    a.valu("v_lshlrev_b32", t0, 4, t0)
    a.valu("v_lshl_add_u32", t0, vG, 8, t0)
    a.salu("s_and_b32", sT1, sWc, 1)
    a.salu("s_lshl_b32", sT1, sT1, 7)
    a.valu("v_xor_b32", vK0, sT1, t0)
    a.valu("v_xor_b32", vK1, 64, vK0)
    vTE, vTO = V(154), V(155)
    a.valu("v_lshrrev_b32", t0, 2, vQ)
    a.valu("v_lshlrev_b32", t0, 5, t0)
    a.valu("v_and_b32", t1, 3, vQ)
    a.valu("v_lshl_add_u32", t0, t1, 3, t0)
    a.valu("v_lshl_add_u32", t0, vG, 10, t0)
    a.valu("v_and_b32", t1, 1, vG)
    a.valu("v_lshlrev_b32", t1, 7, t1)
    a.valu("v_add_u32", vTE, t0, t1)
    a.valu("v_sub_u32", vTO, t0, t1)
    vKb = V(160)
    a.valu("v_xor_b32", t0, vG, vQ)
    a.valu("v_lshlrev_b32", t0, 4, t0)
    a.valu("v_lshl_add_u32", vKb, vQ, 8, t0)
    vQW, vQR, vQW2 = V(164), V(165), V(166)
    a.salu("s_lshl_b32", sT1, sWc, 10)
    a.salu("s_add_u32", sT1, sT1, 65536)
    a.valu("v_lshrrev_b32", t0, 1, vG)
    a.valu("v_lshl_add_u32", t0, t0, 4, vQ)
    a.valu("v_lshlrev_b32", t0, 4, t0)
    a.valu("v_and_b32", t1, 1, vG)
    a.valu("v_lshl_add_u32", t0, t1, 3, t0)
    a.valu("v_add_u32", vQW, sT1, t0)
    a.valu("v_add_u32", vQW2, 65536, vQW)
    a.salu("s_lshl_b32", sT1, sW, 13)
    a.salu("s_add_u32", sT1, sT1, 65536)
    a.valu("v_add_u32", vQR, sT1, vL16)
    a.salu("s_mul_i32", S(7), sB, 3)
    a.salu("s_and_b32", S(8), sHP, 3)
    a.salu("s_mul_i32", S(8), S(8), 5)
    a.salu("s_add_u32", S(7), S(7), S(8))
    a.salu("s_sub_u32", S(8), S(7), 20)
    a.other("s_cmp_ge_u32 s7, 20")
    a.put(I("s_cselect_b32 s92, s8, s7", "salu", rd=[S(7), S(8)], wr=[sRot]))
    sWsrc, sWdst = S(75), S(76)
    a.salu("s_lshr_b32", sT1, sWc, 2)
    a.salu("s_lshl_b32", sT1, sT1, 8)
    a.salu("s_lshr_b32", sT2, sWc, 1)
    a.salu("s_and_b32", sT2, sT2, 1)
    a.salu("s_lshl_b32", sT2, sT2, 15)
    a.salu("s_add_u32", sT1, sT1, sT2)
    a.salu("s_and_b32", sT2, sWc, 1)
    a.salu("s_lshl_b32", sT2, sT2, 17)
    a.salu("s_add_u32", sWsrc, sT1, sT2)
    a.salu("s_lshl_b32", sWdst, sWc, 11)

    def kv_dma(src, slot, tag=None):
        a.salu("s_add_u32", sM0, slot, sWdst)
        a.salu("s_add_u32", sT1, src, sWdst)
        for isV in range(2):
            for n in range(2):
                a.put(I(f"s_add_u32 m0, {sM0}, {L_RING + isV * 16384 + n * 1024}", "salu", rd=[sM0], wr=["m0"]))
                a.salu("s_add_u32", sT2, sT1, n * 1024)
                a.bload_lds((vV0, vV1)[n] if isV else (vK0, vK1)[n], srdV if isV else srdK, sT2, flags=" nt", tag=tag)

    STG = 25600
    NS6 = 6

    def stg(g):
        return ((g + 4) % NS6) * STG

    acc = [[V(48 + 36 * e + 4 * qt, 4) for qt in range(9)] for e in range(2)]
    Xf = [V(120 + 4 * i, 4) for i in range(6)]
    Wf = [[V(16 + 8 * b_ + 4 * e, 4) for e in range(2)] for b_ in range(2)]
    QA = 65536

    def kso(ks):
        a.salu("s_add_u32", sKo, sRot, ks)
        a.salu("s_sub_u32", sT2, sKo, 20)
        a.put(I(f"s_cmp_ge_u32 {sKo}, 20", "salu", rd=[sKo]))
        a.put(I(f"s_cselect_b32 {sKo}, {sT2}, {sKo}", "salu", rd=[sKo, sT2], wr=[sKo]))

    if EXP in ("linx", "linxw"):
        a.valu("v_mov_b32", vXa, vL16)
    if EXP in ("linw", "linxw"):
        a.valu("v_mov_b32", vWs0, vL16)
        a.valu("v_mov_b32", vWs1, vL16)
    sXd = S(77)
    a.salu("s_lshl_b32", sXd, sW, 10)

    def st_dma(g):
        kso(g)
        a.salu("s_lshl_b32", sT1, sKo, 18)
        a.salu("s_add_u32", sT1, sT1, sWsrc)
        for n in range(2):
            a.put(I(f"s_add_u32 m0, {sWdst}, {stg(g) + n * 1024}", "salu", rd=[sWdst], wr=["m0"]))
            a.salu("s_add_u32", sT2, sT1, n * 65536)
            a.bload_lds((vWs0, vWs1)[n], srdWQ, sT2, tag=f"w{g}")
        a.put(I(f"s_add_u32 m0, {sXd}, {stg(g) + 16384}", "salu", rd=[sXd], wr=["m0"]))
        a.salu("s_lshl_b32", sT2, sKo, 6)
        a.bload_lds(vXa, srdX, sT2, tag=f"w{g}")

    a.salu("s_lshr_b32", sT1, sWc, 2)
    a.salu("s_lshl_b32", sT1, sT1, 13)
    a.salu("s_and_b32", sT2, sWc, 3)
    a.salu("s_lshl_b32", sT2, sT2, 8)
    a.salu("s_add_u32", sT1, sT1, sT2)
    vTr = [[V(144 + 2 * k_ + e) for e in range(2)] for k_ in range(3)]
    vXr = [V(150), V(151), V(156)]
    for k_ in range(3):
        a.salu("s_add_u32", sT2, sT1, k_ * 65536)
        a.valu("v_add_u32", vTr[k_][0], sT2, vTE)
        a.salu("s_add_u32", sT2, sT1, k_ * 65536 + 128)
        a.valu("v_add_u32", vTr[k_][1], sT2, vTO)
        a.valu("v_add_u32", vXr[k_], k_ * 65536, vL16)

    def ldsa(addr, extra):
        k_ = (addr + extra) // 65536
        k0 = addr // 65536
        return k0, addr % 65536

    def wreads(g):
        for e in range(2):
            for h in range(2):
                ad = stg(g) + h * 4096
                k_ = (ad + 8192 + 1024 + 4096) // 65536
                k_ = ad // 65536
                a.put(I(f"ds_read_b64_tr_b16 {Wf[g & 1][e][2 * h:2 * h + 2]}, {vTr[k_][e]} offset:{ad % 65536}",
                        "ds", rd=[vTr[k_][e]], wr=[Wf[g & 1][e][2 * h:2 * h + 2]], tag=f"wf{g}"))

    def xread(F):
        g, qt = divmod(F, 9)
        ad = stg(g) + 16384 + qt * 1024
        a.dsread(Xf[F % 6], vXr[ad // 65536], ad % 65536, tag=f"xf{F}")

    stamp(0)
    stamp(28, True)
    for g in range(NS6 - 1):
        st_dma(g)
    a.wait(vm=["w0"])
    a.barrier()
    sAct = S(78)
    labq = newlab("q8a")
    a.other("s_cmp_ge_u32 s3, 8")
    a.other(f"s_cbranch_scc1 {labq}")
    wreads(0)
    for F in range(5):
        xread(F)
    a.raw(labq + ":")
    for g in range(20):
        a.wait(vm=[f"w{min(g + 1, 19)}"])
        a.barrier()
        if g >= 1 and g % 2 == 0 and EXP == "steps":
            stamp(9 + g // 2)
        if g + NS6 - 1 < 20:
            st_dma(g + NS6 - 1)
        if g in (16, 17):
            c = g - 16
            a.salu("s_mov_b32", S(95), c * 16384)
            a.salu("s_mov_b32", S(96), c * 32768)
            kv_dma(S(95), S(96), tag="kv")
        labq = newlab("q8")
        a.other("s_cmp_ge_u32 s3, 8")
        a.other(f"s_cbranch_scc1 {labq}")
        if g + 1 < 20:
            wreads(g + 1)
        for qt in range(9):
            F = 9 * g + qt
            if F + 5 < 180:
                xread(F + 5)
            a.wait(lg=[f"xf{F}", f"wf{g}"])
            for e in range(2):
                a.mfma(acc[e][qt], Wf[g & 1][e], Xf[F % 6], acc[e][qt] if g else 0)
        a.raw(labq + ":")
    a.wait(lg="all")
    a.barrier()
    labq = newlab("q8b")
    a.other("s_cmp_ge_u32 s3, 8")
    a.other(f"s_cbranch_scc1 {labq}")
    a.other("s_nop 7")
    pq = V(120, 4)
    for qt in range(9):
        for e in range(2):
            p2 = pq[2 * e:2 * e + 2]
            a.valu("v_cvt_pk_bf16_f32", p2[0], acc[e][qt][0], acc[e][qt][1])
            a.valu("v_cvt_pk_bf16_f32", p2[1], acc[e][qt][2], acc[e][qt][3])
            a.dswrite(vQW if qt < 8 else vQW2, p2, (qt % 8) * 8192 + e * 512)
    a.raw(labq + ":")
    a.wait(lg="all")
    a.barrier()
    a.hist = []
    for hd in range(2):
        for s_ in range(4):
            a.dsread(Qf[hd][4 * s_:4 * s_ + 4], vQR, (hd * 4 + s_) * 1024)
    a.wait(lg="all")
    stamp(1)

    O = V(48, 32)
    Sb = V(80, 16)
    P = V(96, 8)
    Kf = [V(104, 16), V(120, 16)]
    Vf = [V(136 + 4 * i, 4) for i in range(2)] + [V(104 + 4 * i, 4) for i in range(8)]
    NVF = 10
    m, l, mx, tt, al, mc = V(152), V(153), V(7), V(8), V(9), V(5)
    vKx = [V(160 + i) for i in range(4)]
    Lac, Ones = V(164, 4), V(144, 4)
    vVa = [V(156), V(157)]
    for i in range(3, -1, -1):
        a.valu("v_xor_b32", vKx[i], i * 64, vKb)
    for i in range(4):
        a.valu("v_mov_b32", Ones[i], "0x3f803f80")
    a.valu("v_add_u32", vVa[0], L_RING + 16384, vTE)
    a.valu("v_add_u32", vVa[1], L_RING + 16384, vTO)
    vOSt = V(158)
    a.valu("v_lshlrev_b32", vOSt, 1, vL8)
    Qw = Qf[0]
    sGC, sSl, sIt, sCh, sD1, sD2 = S(79), S(80), S(95), S(96), S(97), S(94)
    sTau = S(78)
    a.salu("s_mov_b32", sTau, hex(f32bits(8.0 / CSCALE)))
    a.salu("s_mov_b32", sGC, 0)
    a.salu("s_mov_b32", sSl, 0)
    a.salu("s_mov_b32", sIt, 0)
    a.vm = []

    def stampA(i):
        if not STAMP:
            return
        a.salu("s_lshl_b32", S(99), sIt, 4)
        a.salu("s_add_u32", S(88), S(88), S(99))
        stamp(i)
        a.salu("s_sub_u32", S(88), S(88), S(99))

    def nextslot(d, s_, n):
        a.salu("s_add_u32", d, s_, n * 32768)
        a.salu("s_sub_u32", sT2, d, 3 * 32768)
        a.put(I(f"s_cmp_ge_u32 {d}, {3 * 32768}", "salu", rd=[d]))
        a.put(I(f"s_cselect_b32 {d}, {sT2}, {d}", "salu", rd=[d, sT2], wr=[d]))

    lab_item = newlab("item")
    a.label(lab_item)
    a.valu("v_mov_b32", m, hex(f32bits(-1e30)))
    for k in range(4):
        a.valu("v_mov_b32", Lac[k], 0)
    for k in range(32):
        a.valu("v_mov_b32", O[k], 0)
    a.salu("s_mov_b32", sCh, 0)
    lab_ch = newlab("chunk")
    a.label(lab_ch)
    a.other("s_waitcnt vmcnt(4) lgkmcnt(0)")
    a.barrier()

    def kread(kt):
        for ds in range(4):
            a.dsread(Kf[kt & 1][4 * ds:4 * ds + 4], vKx[ds], kt * 4096, tag=f"k{kt}")

    kread(0)
    kread(1)
    labskip = newlab("nodma")
    a.other("s_cmp_ge_u32 s3, 8")
    a.other(f"s_cbranch_scc1 {labskip}")
    a.salu("s_add_u32", sD1, sGC, 2)
    a.salu("s_lshl_b32", sD1, sD1, 14)
    nextslot(sD2, sSl, 2)
    kv_dma(sD1, sD2)
    a.raw(labskip + ":")
    for kt in range(4):
        a.wait(lg=f"k{kt}")
        for ds in range(4):
            a.mfma(Sb[4 * kt:4 * kt + 4], Kf[kt & 1][4 * ds:4 * ds + 4], Qw[4 * ds:4 * ds + 4],
                   Sb[4 * kt:4 * kt + 4] if ds else 0)
        if kt + 2 < 4:
            kread(kt + 2)

    def vread(f):
        ks, dt = f >> 3, f & 7
        for h in range(2):
            a.put(I(f"ds_read_b64_tr_b16 {Vf[f % NVF][2 * h:2 * h + 2]}, {vVa[dt & 1]} offset:{(ks * 2 + h) * 4096 + dt * 128}", "ds",
                    rd=[vVa[dt & 1]], wr=[Vf[f % NVF][2 * h:2 * h + 2]], tag=f"v{f}"))

    for f in range(NVF - 1):
        vread(f)
    a.valu("v_max3_f32", mx, Sb[0], Sb[1], Sb[2])
    for k in range(3, 15, 2):
        a.valu("v_max3_f32", mx, mx, Sb[k], Sb[k + 1])
    a.valu("v_max_f32", mx, mx, Sb[15])
    a.valu("v_sub_f32", tt, mx, m)
    a.put(I(f"v_cmp_lt_f32 vcc, {sTau}, {tt}", "valu", rd=[sTau, tt], wr=["vcc"]))
    labnr = newlab("nors")
    a.other("s_nop 1")
    a.other(f"s_cbranch_vccz {labnr}")
    a.valu("v_max_f32", mx, mx, m)
    for wh in (32, 16):
        a.valu("v_mov_b32", tt, mx)
        a.permlane(wh, mx, tt)
        a.valu("v_max_f32", mx, mx, tt)
    a.valu("v_sub_f32", al, m, mx)
    a.valu("v_mul_f32", al, sC, al)
    a.trans("v_exp_f32", al, al)
    a.valu("v_mul_f32", mc, sC, mx)
    a.valu("v_mov_b32", m, mx)
    a.valu("v_mul_f32", Lac[0], Lac[0], al)
    for k in range(32):
        a.valu("v_mul_f32", O[k], O[k], al)
    a.other("s_nop 1")
    a.raw(labnr + ":")
    for k in range(8):
        for e in range(2):
            a.valu("v_fma_f32", Sb[2 * k + e], Sb[2 * k + e], sC, mc, mods={3: "-{}"})
        for e in range(2):
            a.trans("v_exp_f32", Sb[2 * k + e], Sb[2 * k + e])
        a.valu("v_cvt_pk_bf16_f32", P[k], Sb[2 * k], Sb[2 * k + 1])
    for f in range(16):
        if f + NVF - 1 < 16:
            vread(f + NVF - 1)
        if f % 2 == 0:
            a.wait(lg=f"v{f + 1}")
        ks, dt = f >> 3, f & 7
        if dt == 0:
            a.mfma(Lac, Ones, P[4 * ks:4 * ks + 4], Lac)
        a.mfma(O[4 * dt:4 * dt + 4], Vf[f % NVF], P[4 * ks:4 * ks + 4], O[4 * dt:4 * dt + 4])
    nextslot(sD1, sSl, 1)
    a.salu("s_sub_u32", sD2, sD1, sSl)
    a.salu("s_mov_b32", sSl, sD1)
    for r_ in vKx + vVa:
        a.valu("v_add_u32", r_, sD2, r_)
    a.salu("s_add_u32", sGC, sGC, 1)
    a.salu("s_add_u32", sCh, sCh, 1)
    a.other("s_nop 7")
    a.other(f"s_cmp_lt_u32 s{sCh.n}, 8")
    a.other(f"s_cbranch_scc1 {lab_ch}")
    a.other("s_nop 7")
    a.hist = []
    pk = V(104, 16)
    a.trans("v_rcp_f32", al, Lac[0])
    for k in range(32):
        a.valu("v_mul_f32", O[k], O[k], al)
    for j in range(4):
        for e in range(4):
            dt = 2 * j + (e >> 1)
            r = 2 * (e & 1)
            a.valu("v_cvt_pk_bf16_f32", pk[4 * j + e], O[4 * dt + r], O[4 * dt + r + 1])
    a.salu("s_lshl_b32", sT1, sW, 17)
    a.salu("s_add_u32", sT1, sT1, sOB)
    a.salu("s_lshl_b32", sT2, sIt, 12)
    a.salu("s_add_u32", sT1, sT1, sT2)
    for j in range(4):
        a.bstore(pk[4 * j:4 * j + 4], vOSt, srdWS, sT1, j * 1024, flags=OSF)
    for k in range(16):
        a.valu("v_mov_b32", Qw[k], Qf[1][k])
    stampA(4)
    a.salu("s_add_u32", sIt, sIt, 1)
    a.other(f"s_cmp_lt_u32 s{sIt.n}, 2")
    a.other(f"s_cbranch_scc1 {lab_item}")
    stamp(29, True)
    a.label("L_attn_end")
    a.other("s_endpgm")


def gen_oproj(a):
    a.raw(".p2align 8")
    a.raw("oproj_kernel:")
    a.other("s_cmp_ge_u32 s2, 240")
    a.other("s_cbranch_scc1 L_oproj_end")
    load_ptrs(a)
    sW, sP, sRB, sNB = S(3), S(4), S(5), S(6)
    sLO, sHI = S(11), S(12)
    srdO, srdWO, srdOUT = S(44, 4), S(48, 4), S(52, 4)
    a.salu("s_and_b32", S(7), S(2), 7)
    a.salu("s_lshr_b32", S(8), S(2), 3)
    a.salu("s_lshr_b32", sP, S(7), 2)
    a.salu("s_mul_i32", S(9), S(8), 205)
    a.salu("s_lshr_b32", S(9), S(9), 10)
    a.salu("s_and_b32", S(13), S(7), 3)
    a.salu("s_mul_i32", S(13), S(13), 6)
    a.salu("s_add_u32", sRB, S(13), S(9))
    a.salu("s_mul_i32", S(9), S(9), 5)
    a.salu("s_sub_u32", sNB, S(8), S(9))
    a.salu("s_mov_b32", S(75), S(8))
    a.salu("s_mov_b32", sLO, "0x05040100")
    a.salu("s_mov_b32", sHI, "0x07060302")
    vT = V(0)
    vLane, vQ, vG, vWv = V(1), V(2), V(3), V(4)
    a.valu("v_and_b32", vLane, 63, vT)
    a.valu("v_and_b32", vQ, 15, vT)
    a.valu("v_lshrrev_b32", vG, 4, vLane)
    a.valu("v_lshrrev_b32", vWv, 6, vT)
    a.rfl(sW, vWv)
    a.other("s_waitcnt lgkmcnt(0)")
    a.other("s_cmp_eq_u32 s4, 0")
    a.other("s_cselect_b64 s[64:65], s[24:25], s[34:35]")
    mk_srd(a, 48, S(64), S(65), 4096 * 1280)
    a.salu("s_mul_i32", S(7), sP, OWS_P)
    a.salu("s_add_u32", S(8), S(40), S(7))
    a.salu("s_addc_u32", S(9), S(41), 0)
    mk_srd(a, 44, S(8), S(9), OWS_P)
    mk_srd(a, 52, S(36), S(37), 1152 * 2560)
    sOb, sWb = S(72), S(73)
    a.salu("s_mul_i32", S(7), sRB, 3 * 128)
    a.salu("s_lshl_b32", S(8), sW, 5)
    a.salu("s_add_u32", S(7), S(7), S(8))
    a.salu("s_lshl_b32", sOb, S(7), 10)
    a.salu("s_mul_i32", S(7), sW, 32 * 40960)
    a.salu("s_lshl_b32", S(8), sNB, 8)
    a.salu("s_add_u32", sWb, S(7), S(8))
    vO = [V(5 + i) for i in range(3)]
    vWo = [V(11), V(12)]
    vL16, t0, t1, vRW, vRR, vOUT = V(15), V(16), V(17), V(18), V(19), V(20)
    a.valu("v_lshlrev_b32", vL16, 4, vLane)
    for i in range(3):
        a.valu("v_add_u32", vO[i], i * 131072, vL16)
    a.valu("v_mul_u32_u24", t0, 4 * 1280, vG)
    a.valu("v_lshl_add_u32", vWo[0], vQ, 4, t0)
    a.valu("v_add_u32", vWo[1], 16 * 1280, vWo[0])
    a.valu("v_mul_u32_u24", t0, 24576, vWv)
    a.valu("v_add_u32", vRW, t0, vL16)
    a.valu("v_lshl_add_u32", vRR, vWv, 13, vL16)
    vRR2 = V(21)
    a.valu("v_add_u32", vRR2, 49152, vRR)
    a.salu("s_mul_i32", S(7), sRB, 48 * 2560)
    a.salu("s_mul_i32", S(8), sP, 1280)
    a.salu("s_add_u32", S(7), S(7), S(8))
    a.salu("s_lshl_b32", S(8), sNB, 8)
    a.salu("s_add_u32", S(74), S(7), S(8))
    a.valu("v_lshl_add_u32", t0, vWv, 4, vQ)
    a.valu("v_mul_u32_u24", t0, 2560, t0)
    a.valu("v_lshl_add_u32", vOUT, vG, 6, t0)

    stmp = [S(76 + i) for i in range(8)]
    stc = [0]

    def soff(val, base):
        r = stmp[stc[0] % len(stmp)]
        stc[0] += 1
        a.salu("s_add_u32", r, base, val)
        return r

    _st = mk_stamper(a, sW, 3 << 18)

    def stamp(i, real=False):
        _st(i, t0, t1, real)

    stamp(0)
    stamp(28, True)
    D = D2
    WR = [V(32 + 32 * i, 32) for i in range(D)]
    OF = [A(96 + 12 * i, 12) for i in range(D)]
    T = V(32 + 32 * D, 32)

    def acc(i, t):
        return A((i * 8 + t) * 4, 4)

    def loads(i):
        st = i % D
        sI, sJ = S(92), S(93)
        a.salu("s_add_u32", sI, S(75), i)
        a.salu("s_and_b32", sI, sI, RB - 1)
        a.salu("s_add_u32", sI, sI, i & ~(RB - 1))
        a.salu("s_lshl_b32", sJ, sI, 10)
        so = soff(sJ, sOb)
        for k in range(3):
            a.bload(OF[st][4 * k:4 * k + 4], vO[k], srdO, so, tag=f"L{i}")
        a.salu("s_mul_i32", sJ, sI, 40960)
        so = soff(sJ, sWb)
        for e in range(8):
            a.bload(WR[st][4 * e:4 * e + 4], vWo[e >> 2], srdWO, so, (e & 3) * 1280, tag=f"L{i}")

    for i in range(D):
        loads(i)
    for i in range(32):
        st = i % D
        a.wait(vm=f"L{i}")
        w = WR[st]
        for t in range(8):
            for ii in range(4):
                a.valu("v_perm_b32", T[4 * t + ii], w[4 * (2 * ii + 1) + (t >> 1)], w[4 * (2 * ii) + (t >> 1)],
                       sHI if (t & 1) else sLO)
        for t in range(8):
            for k in range(3):
                a.mfma(acc(k, t), T[4 * t:4 * t + 4], OF[st][4 * k:4 * k + 4], acc(k, t) if i else 0)
        if i + D < 32:
            loads(i + D)
    stamp(1)
    for k in range(3):
        for t in range(8):
            a.dswrite(vRW, acc(k, t), (k * 8 + t) * 1024)
    a.wait(lg="all")
    a.barrier()
    a.other("s_cmp_ge_u32 s3, 3")
    a.other("s_cbranch_scc1 L_oproj_end")
    Rr = V(32, 128)
    pk = V(160, 16)
    for s in range(4):
        for t in range(8):
            a.dsread(Rr[(s * 8 + t) * 4:(s * 8 + t) * 4 + 4], vRR if s < 2 else vRR2, (s & 1) * 24576 + t * 1024)
    a.wait(lg="all")
    for t in range(8):
        for r in range(4):
            d = Rr[t * 4 + r]
            for s in range(1, 4):
                a.valu("v_add_f32", d, d, Rr[(s * 8 + t) * 4 + r])
    for r in range(4):
        for tp in range(4):
            a.valu("v_cvt_pk_bf16_f32", pk[4 * r + tp], Rr[(2 * tp) * 4 + r], Rr[(2 * tp + 1) * 4 + r])
    for r in range(4):
        a.bstore(pk[4 * r:4 * r + 4], vOUT, srdOUT, S(74), r * 16)
    stamp(2)
    stamp(29, True)
    a.label("L_oproj_end")
    a.other("s_endpgm")


def kd(name, nvgpr, accum, nsgpr=100):
    return f""".amdhsa_kernel {name}
  .amdhsa_next_free_vgpr {nvgpr}
  .amdhsa_next_free_sgpr {nsgpr}
  .amdhsa_accum_offset {accum}
  .amdhsa_group_segment_fixed_size 0
  .amdhsa_kernarg_size 104
  .amdhsa_user_sgpr_count 2
  .amdhsa_user_sgpr_kernarg_segment_ptr 1
  .amdhsa_system_sgpr_workgroup_id_x 1
.end_amdhsa_kernel
"""


def main(out):
    a = Asm()
    gen_attn(a)
    c1 = dict(a.counts)
    a.hist = []
    a.vm = []
    a.lg = []
    gen_oproj(a)
    txt = HEADER
    txt += f"; @launch kernel=attn_kernel grid=(256,1,1) block=(576,1,1) lds={LDS1}\n"
    txt += "; @launch kernel=oproj_kernel grid=(240,1,1) block=(256,1,1) lds=98304\n"
    txt += '.amdgcn_target "amdgcn-amd-amdhsa--gfx950"\n.text\n'
    txt += ".globl attn_kernel\n.type attn_kernel,@function\n.globl oproj_kernel\n.type oproj_kernel,@function\n"
    txt += a.text()
    txt += '.section .rodata,"a"\n.p2align 6\n'
    txt += kd("attn_kernel", 168, 168)
    txt += ".p2align 6\n"
    txt += kd("oproj_kernel", 256 + 192, 256)
    open(out, "w").write(txt)
    print("attn counts", c1, "nops", a.n_nops, "bytes", len(txt))


if __name__ == "__main__":
    if len(sys.argv) > 2 and sys.argv[2] == "stamp":
        STAMP = True
    main(sys.argv[1] if len(sys.argv) > 1 else f"cdna_kernels/{NAME}.s")
```

```python
import os
import struct
import sys
from asmlib import Asm, V, A, S, R, I

NAME = "concat_heads__mha_block_cached__gqa_block_cached__near_ridge"
HEADER = open("cdna_kernels/%s.s.ref" % NAME).read().split("; Override launch geometry")[0]
STAMP = False
RB = int(os.environ.get("RB", "8"))
EXP = os.environ.get("EXP", "")
SAFE = True
KVP = int(os.environ.get("KVP", "13"))


def f32bits(x):
    return struct.unpack("<I", struct.pack("<f", x))[0]


CSCALE = (128 ** -0.5) * 1.4426950408889634
OWS_P = 72 * 128 * 1024

L_RING = 0
L_WQR = 3 * 32768
LDS1 = 98304 + 3 * 18432
NW1 = 9
NST = 5
OSF = os.environ.get('OSF', ' sc0 sc1')
D2 = int(os.environ.get('D2', '5'))
NOLD = os.environ.get('NOLD')


def load_ptrs(a):
    a.other("s_load_dwordx16 s[16:31], s[0:1], 0")
    a.other("s_load_dwordx8 s[32:39], s[0:1], 64")
    a.other("s_load_dwordx2 s[40:41], s[0:1], 96")


def mk_srd(a, d, base_lo, base_hi, nrec):
    a.salu("s_mov_b32", S(d), base_lo)
    a.salu("s_and_b32", S(d + 1), base_hi, "0xffff")
    a.salu("s_mov_b32", S(d + 2), nrec)
    a.salu("s_mov_b32", S(d + 3), "0x20000")


def mk_stamper(a, sW, wgs_off, nw=4):
    if not STAMP:
        return lambda i, vz, vt, real=False: None
    srd = S(84, 4)
    a.salu("s_add_u32", S(88), S(40), 64 << 20)
    a.salu("s_addc_u32", S(89), S(41), 0)
    mk_srd(a, 84, S(88), S(89), 1 << 20)
    a.salu("s_mul_i32", S(88), S(2), nw)
    a.salu("s_add_u32", S(88), S(88), sW)
    a.salu("s_lshl_b32", S(88), S(88), 7)
    a.salu("s_add_u32", S(88), S(88), wgs_off)

    def stamp(i, vz, vt, real=False):
        a.other("s_memrealtime s[90:91]" if real else "s_memtime s[90:91]")
        a.wait(lg="all")
        a.valu("v_mov_b32", vz, 0)
        a.valu("v_mov_b32", vt, S(90))
        a.bstore(vt, vz, srd, S(88), i * 4, tag="stamp")
    return stamp


_lab = [0]


def newlab(p):
    _lab[0] += 1
    return f"L_{p}{_lab[0]}"


def gen_attn(a):
    a.raw(".p2align 8")
    a.raw("attn_kernel:")
    a.other("s_cmp_ge_u32 s2, 256")
    a.other("s_cbranch_scc1 L_attn_end")
    load_ptrs(a)
    sW, sP, sHP, sB = S(3), S(4), S(5), S(6)
    sC = S(10)
    srdX, srdK, srdV, srdWQ, srdWS = S(44, 4), S(48, 4), S(52, 4), S(56, 4), S(60, 4)
    a.salu("s_and_b32", S(7), S(2), 7)
    a.salu("s_lshr_b32", S(8), S(2), 3)
    a.salu("s_lshr_b32", sP, S(7), 2)
    a.salu("s_and_b32", S(7), S(7), 3)
    a.salu("s_lshl_b32", S(7), S(7), 2)
    a.salu("s_and_b32", S(9), S(8), 3)
    a.salu("s_add_u32", sHP, S(7), S(9))
    a.salu("s_lshr_b32", sB, S(8), 2)
    a.salu("s_mov_b32", sC, hex(f32bits(CSCALE)))
    vT = V(0)
    vLane, vQ, vG, vWv = V(1), V(2), V(3), V(4)
    a.valu("v_and_b32", vLane, 63, vT)
    a.valu("v_and_b32", vQ, 15, vT)
    a.valu("v_lshrrev_b32", vG, 4, vLane)
    a.valu("v_lshrrev_b32", vWv, 6, vT)
    a.rfl(sW, vWv)
    a.other("s_waitcnt lgkmcnt(0)")
    a.other("s_cmp_eq_u32 s4, 0")
    for i in range(4):
        a.put(I(f"s_cselect_b64 s[{64 + 2 * i}:{65 + 2 * i}], s[{16 + 2 * i}:{17 + 2 * i}], s[{26 + 2 * i}:{27 + 2 * i}]", "salu"))
    a.salu("s_mul_i32", S(7), sB, 0 if EXP in ("same", "samex") else 184320)
    a.salu("s_add_u32", S(8), S(64), S(7))
    a.salu("s_addc_u32", S(9), S(65), 0)
    mk_srd(a, 44, S(8), S(9), 184320)
    a.salu("s_lshl_b32", S(7), sB, 5)
    a.salu("s_lshl_b32", S(8), sHP, 1)
    a.salu("s_add_u32", S(7), S(7), S(8))
    a.salu("s_lshl_b32", S(7), S(7), 17)
    a.salu("s_add_u32", S(8), S(66), S(7))
    a.salu("s_addc_u32", S(9), S(67), 0)
    mk_srd(a, 48, S(8), S(9), 262144)
    a.salu("s_add_u32", S(8), S(68), S(7))
    a.salu("s_addc_u32", S(9), S(69), 0)
    mk_srd(a, 52, S(8), S(9), 262144)
    a.salu("s_lshl_b32", S(7), sHP, 9)
    if EXP in ("same", "samew"):
        a.salu("s_mov_b32", S(7), 0)
    a.salu("s_add_u32", S(8), S(70), S(7))
    a.salu("s_addc_u32", S(9), S(71), 0)
    a.salu("s_sub_u32", S(13), 640 * 8192, S(7))
    mk_srd(a, 56, S(8), S(9), S(13))
    a.salu("s_mul_i32", S(7), sP, OWS_P)
    a.salu("s_add_u32", S(8), S(40), S(7))
    a.salu("s_addc_u32", S(9), S(41), 0)
    mk_srd(a, 60, S(8), S(9), OWS_P)
    sOB = S(72)
    a.salu("s_mul_i32", S(7), sB, 9 * 128)
    a.salu("s_lshl_b32", S(8), sHP, 3)
    a.salu("s_add_u32", S(7), S(7), S(8))
    a.salu("s_lshl_b32", sOB, S(7), 10)

    vL16, vL8, t0, t1 = V(5), V(6), V(14), V(15)
    a.valu("v_lshlrev_b32", vL16, 4, vLane)
    a.valu("v_lshlrev_b32", vL8, 3, vLane)
    _st = mk_stamper(a, sW, 0, 16)

    def stamp(i, real=False):
        _st(i, t0, t1, real)

    sT1, sT2, sM0, sRot, sKo, sWc = S(81), S(82), S(83), S(92), S(93), S(74)
    a.salu("s_min_u32", sWc, sW, 7)
    Qf = [V(16, 16), V(32, 16)]
    vXa, vWs0, vWs1, vK0, vK1, vV0, vV1 = V(7), V(8), V(9), V(10), V(11), V(12), V(13)
    vI, t2 = V(152), V(153)
    a.salu("s_mul_i32", sT1, sW, 16 * 1280)
    a.valu("v_lshrrev_b32", t0, 3, vLane)
    a.valu("v_and_b32", t1, 7, vLane)
    a.valu("v_xor_b32", t1, t1, t0)
    a.valu("v_mul_u32_u24", t0, 1280, t0)
    a.valu("v_lshl_add_u32", t0, t1, 4, t0)
    a.valu("v_add_u32", vXa, sT1, t0)
    a.valu("v_lshrrev_b32", t0, 3, vLane)
    a.valu("v_lshlrev_b32", t0, 5, t0)
    a.valu("v_and_b32", t1, 1, vLane)
    a.valu("v_lshl_add_u32", t0, t1, 4, t0)
    a.valu("v_lshrrev_b32", t1, 1, vLane)
    a.valu("v_and_b32", t1, 3, t1)
    a.valu("v_lshl_add_u32", vWs0, t1, 13, t0)
    a.valu("v_xor_b32", vWs1, 32, vWs0)
    a.valu("v_lshl_add_u32", vV0, t1, 8, t0)
    a.valu("v_xor_b32", vV1, 32, vV0)
    a.valu("v_lshrrev_b32", t0, 5, vLane)
    a.valu("v_lshrrev_b32", t1, 1, vLane)
    a.valu("v_and_b32", t1, 15, t1)
    a.valu("v_xor_b32", t1, t1, t0)
    a.valu("v_lshlrev_b32", t1, 5, t1)
    a.valu("v_lshl_add_u32", t1, t0, 13, t1)
    a.valu("v_and_b32", t0, 1, vLane)
    a.valu("v_lshl_add_u32", t1, t0, 4, t1)
    a.salu("s_lshr_b32", sT1, sWc, 1)
    a.salu("s_and_b32", sT1, sT1, 1)
    a.salu("s_lshl_b32", sT1, sT1, 7)
    a.valu("v_xor_b32", vWs0, sT1, t1)
    a.valu("v_xor_b32", vWs1, 64, vWs0)
    a.valu("v_xor_b32", t0, vQ, vG)
    a.valu("v_lshlrev_b32", t0, 4, t0)
    a.valu("v_lshl_add_u32", t0, vG, 8, t0)
    a.salu("s_and_b32", sT1, sWc, 1)
    a.salu("s_lshl_b32", sT1, sT1, 7)
    a.valu("v_xor_b32", vK0, sT1, t0)
    a.valu("v_xor_b32", vK1, 64, vK0)
    vTE, vTO = V(154), V(155)
    a.valu("v_lshrrev_b32", t0, 2, vQ)
    a.valu("v_lshlrev_b32", t0, 5, t0)
    a.valu("v_and_b32", t1, 3, vQ)
    a.valu("v_lshl_add_u32", t0, t1, 3, t0)
    a.valu("v_lshl_add_u32", t0, vG, 10, t0)
    a.valu("v_and_b32", t1, 1, vG)
    a.valu("v_lshlrev_b32", t1, 7, t1)
    a.valu("v_add_u32", vTE, t0, t1)
    a.valu("v_sub_u32", vTO, t0, t1)
    vKb = V(160)
    a.valu("v_xor_b32", t0, vG, vQ)
    a.valu("v_lshlrev_b32", t0, 4, t0)
    a.valu("v_lshl_add_u32", vKb, vQ, 8, t0)
    vQW, vQR, vQW2 = V(164), V(165), V(166)
    a.salu("s_lshl_b32", sT1, sWc, 10)
    a.salu("s_add_u32", sT1, sT1, 65536)
    a.valu("v_lshrrev_b32", t0, 1, vG)
    a.valu("v_lshl_add_u32", t0, t0, 4, vQ)
    a.valu("v_lshlrev_b32", t0, 4, t0)
    a.valu("v_and_b32", t1, 1, vG)
    a.valu("v_lshl_add_u32", t0, t1, 3, t0)
    a.valu("v_add_u32", vQW, sT1, t0)
    a.valu("v_add_u32", vQW2, 65536, vQW)
    a.salu("s_lshl_b32", sT1, sW, 13)
    a.salu("s_add_u32", sT1, sT1, 65536)
    a.valu("v_add_u32", vQR, sT1, vL16)
    a.salu("s_mul_i32", S(7), sB, 3)
    a.salu("s_and_b32", S(8), sHP, 3)
    a.salu("s_mul_i32", S(8), S(8), 5)
    a.salu("s_add_u32", S(7), S(7), S(8))
    a.salu("s_mul_i32", S(8), S(7), 205)
    a.salu("s_lshr_b32", S(8), S(8), 11)
    a.salu("s_mul_i32", S(8), S(8), 10)
    a.salu("s_sub_u32", S(7), S(7), S(8))
    a.salu("s_lshl_b32", sRot, S(7), 1)
    sWsrc, sWdst = S(75), S(76)
    a.salu("s_lshl_b32", sWsrc, sWc, 15)
    a.salu("s_lshl_b32", sWdst, sWc, 11)

    def kv_dma(src, slot, tag=None):
        a.salu("s_add_u32", sM0, slot, sWdst)
        a.salu("s_add_u32", sT1, src, sWdst)
        for isV in range(2):
            for n in range(2):
                a.put(I(f"s_add_u32 m0, {sM0}, {L_RING + isV * 16384 + n * 1024}", "salu", rd=[sM0], wr=["m0"]))
                a.salu("s_add_u32", sT2, sT1, n * 1024)
                a.bload_lds((vV0, vV1)[n] if isV else (vK0, vK1)[n], srdV if isV else srdK, sT2, flags=" nt", tag=tag)

    NS6 = 6
    XR = 98304

    def stg(g):
        return ((g + 4) % NS6) * 16384

    acc = [[V(48 + 36 * e + 4 * qt, 4) for qt in range(9)] for e in range(2)]
    Xf = [V(120 + 4 * i, 4) for i in range(6)]
    Wf = [[V(16 + 8 * b_ + 4 * e, 4) for e in range(2)] for b_ in range(2)]

    def kso(ks):
        a.salu("s_add_u32", sKo, sRot, ks)
        a.salu("s_sub_u32", sT2, sKo, 20)
        a.put(I(f"s_cmp_ge_u32 {sKo}, 20", "salu", rd=[sKo]))
        a.put(I(f"s_cselect_b32 {sKo}, {sT2}, {sKo}", "salu", rd=[sKo, sT2], wr=[sKo]))

    sXd = S(77)
    a.salu("s_lshl_b32", sXd, sW, 11)

    def st_dma(g):
        kso(g)
        a.salu("s_lshl_b32", sT1, sKo, 18)
        a.salu("s_add_u32", sT1, sT1, sWsrc)
        for n in range(2):
            a.put(I(f"s_add_u32 m0, {sWdst}, {stg(g) + n * 1024}", "salu", rd=[sWdst], wr=["m0"]))
            a.salu("s_add_u32", sT2, sT1, n * 16384)
            a.bload_lds((vWs0, vWs1)[n], srdWQ, sT2, tag=f"w{g}")

    def x_dma(j):
        kso(2 * j)
        a.salu("s_lshl_b32", sT1, sKo, 6)
        for rh in range(2):
            a.put(I(f"s_add_u32 m0, {sXd}, {XR + (j % 3) * 18432 + rh * 1024}", "salu", rd=[sXd], wr=["m0"]))
            a.salu("s_add_u32", sT2, sT1, rh * 10240)
            a.bload_lds(vXa, srdX, sT2, tag=f"x{j}")

    vTr = [[V(144 + 2 * k_ + e) for e in range(2)] for k_ in range(2)]
    vXr = [V(150), V(151)]
    a.valu("v_lshrrev_b32", t0, 2, vQ)
    a.valu("v_and_b32", t1, 1, vG)
    a.valu("v_lshl_add_u32", t1, t1, 2, t0)
    a.salu("s_lshl_b32", sT1, sWc, 1)
    a.valu("v_xor_b32", t1, sT1, t1)
    a.valu("v_lshlrev_b32", t1, 5, t1)
    a.valu("v_lshl_add_u32", t1, vG, 12, t1)
    a.valu("v_lshrrev_b32", t2, 1, t0)
    a.valu("v_lshl_add_u32", t1, t2, 10, t1)
    a.valu("v_and_b32", t2, 1, t0)
    a.valu("v_lshl_add_u32", t1, t2, 9, t1)
    a.valu("v_and_b32", t2, 3, vQ)
    a.valu("v_lshl_add_u32", vTr[0][0], t2, 3, t1)
    a.valu("v_xor_b32", vTr[0][1], 32, vTr[0][0])
    for e in range(2):
        a.valu("v_add_u32", vTr[1][e], 65536, vTr[0][e])
    a.valu("v_and_b32", t0, 7, vQ)
    a.valu("v_xor_b32", t1, vG, t0)
    a.valu("v_lshlrev_b32", t1, 4, t1)
    a.valu("v_lshl_add_u32", t1, t0, 7, t1)
    a.valu("v_lshrrev_b32", t0, 3, vQ)
    a.valu("v_lshl_add_u32", t1, t0, 10, t1)
    a.valu("v_add_u32", vXr[0], XR, t1)
    a.valu("v_xor_b32", vXr[1], 64, vXr[0])

    def wreads(g):
        for e in range(2):
            for h in range(2):
                ad = stg(g) + h * 2048
                k_ = ad // 65536
                a.put(I(f"ds_read_b64_tr_b16 {Wf[g & 1][e][2 * h:2 * h + 2]}, {vTr[k_][e]} offset:{ad % 65536}",
                        "ds", rd=[vTr[k_][e]], wr=[Wf[g & 1][e][2 * h:2 * h + 2]], tag=f"wf{g}"))

    def xread(F):
        g, qt = divmod(F, 9)
        a.dsread(Xf[F % 6], vXr[g & 1], ((g >> 1) % 3) * 18432 + qt * 2048, tag=f"xf{F}")

    stamp(0)
    stamp(28, True)
    st_dma(0)
    x_dma(0)
    a.barrier()
    st_dma(1)
    a.barrier()
    st_dma(2)
    x_dma(1)
    st_dma(3)
    st_dma(4)
    a.wait(vm=["w0", "x0"])
    a.barrier()
    sAct = S(78)
    labq = newlab("q8a")
    a.other("s_cmp_ge_u32 s3, 8")
    a.other(f"s_cbranch_scc1 {labq}")
    wreads(0)
    for F in range(5):
        xread(F)
    a.raw(labq + ":")
    for g in range(20):
        a.wait(vm=[f"w{min(g + 1, 19)}", f"x{min(g + 1, 19) // 2}"])
        a.barrier()
        if g >= 1 and g % 2 == 0 and EXP == "steps":
            stamp(9 + g // 2)
        if g + NS6 - 1 < 20:
            st_dma(g + NS6 - 1)
        if g % 2 == 0 and g // 2 + 2 < 10:
            x_dma(g // 2 + 2)
        if g in (16, 18):
            c = (g - 16) // 2
            a.salu("s_mov_b32", S(95), c * 16384)
            a.salu("s_mov_b32", S(96), c * 32768)
            kv_dma(S(95), S(96), tag="kv")
        labq = newlab("q8")
        a.other("s_cmp_ge_u32 s3, 8")
        a.other(f"s_cbranch_scc1 {labq}")
        if g + 1 < 20:
            wreads(g + 1)
        for qt in range(9):
            F = 9 * g + qt
            if F + 5 < 180:
                xread(F + 5)
            a.wait(lg=[f"xf{F}", f"wf{g}"])
            for e in range(2):
                a.mfma(acc[e][qt], Wf[g & 1][e], Xf[F % 6], acc[e][qt] if g else 0)
        a.raw(labq + ":")
    a.wait(lg="all")
    a.barrier()
    labq = newlab("q8b")
    a.other("s_cmp_ge_u32 s3, 8")
    a.other(f"s_cbranch_scc1 {labq}")
    a.other("s_nop 7")
    pq = V(120, 4)
    for qt in range(9):
        for e in range(2):
            p2 = pq[2 * e:2 * e + 2]
            a.valu("v_cvt_pk_bf16_f32", p2[0], acc[e][qt][0], acc[e][qt][1])
            a.valu("v_cvt_pk_bf16_f32", p2[1], acc[e][qt][2], acc[e][qt][3])
            a.dswrite(vQW if qt < 8 else vQW2, p2, (qt % 8) * 8192 + e * 512)
    a.raw(labq + ":")
    a.wait(lg="all")
    a.barrier()
    a.hist = []
    for hd in range(2):
        for s_ in range(4):
            a.dsread(Qf[hd][4 * s_:4 * s_ + 4], vQR, (hd * 4 + s_) * 1024)
    a.wait(lg="all")
    stamp(1)

    O = V(48, 32)
    Sb = V(80, 16)
    P = V(96, 8)
    Kf = [V(104, 16), V(120, 16)]
    Vf = [V(136 + 4 * i, 4) for i in range(2)] + [V(104 + 4 * i, 4) for i in range(8)]
    NVF = 10
    m, l, mx, tt, al, mc = V(152), V(153), V(7), V(8), V(9), V(5)
    vKx = [V(160 + i) for i in range(4)]
    Lac, Ones = V(164, 4), V(144, 4)
    vVa = [V(156), V(157)]
    for i in range(3, -1, -1):
        a.valu("v_xor_b32", vKx[i], i * 64, vKb)
    for i in range(4):
        a.valu("v_mov_b32", Ones[i], "0x3f803f80")
    a.valu("v_add_u32", vVa[0], L_RING + 16384, vTE)
    a.valu("v_add_u32", vVa[1], L_RING + 16384, vTO)
    vOSt = V(158)
    a.valu("v_lshlrev_b32", vOSt, 1, vL8)
    Qw = Qf[0]
    sGC, sSl, sIt, sCh, sD1, sD2 = S(79), S(80), S(95), S(96), S(97), S(94)
    sTau = S(78)
    a.salu("s_mov_b32", sTau, hex(f32bits(8.0 / CSCALE)))
    a.salu("s_mov_b32", sGC, 0)
    a.salu("s_mov_b32", sSl, 0)
    a.salu("s_mov_b32", sIt, 0)
    a.vm = []

    def stampA(i):
        if not STAMP:
            return
        a.salu("s_lshl_b32", S(99), sIt, 4)
        a.salu("s_add_u32", S(88), S(88), S(99))
        stamp(i)
        a.salu("s_sub_u32", S(88), S(88), S(99))

    def nextslot(d, s_, n):
        a.salu("s_add_u32", d, s_, n * 32768)
        a.salu("s_sub_u32", sT2, d, 3 * 32768)
        a.put(I(f"s_cmp_ge_u32 {d}, {3 * 32768}", "salu", rd=[d]))
        a.put(I(f"s_cselect_b32 {d}, {sT2}, {d}", "salu", rd=[d, sT2], wr=[d]))

    lab_item = newlab("item")
    a.label(lab_item)
    a.valu("v_mov_b32", m, hex(f32bits(-1e30)))
    for k in range(4):
        a.valu("v_mov_b32", Lac[k], 0)
    for k in range(32):
        a.valu("v_mov_b32", O[k], 0)
    a.salu("s_mov_b32", sCh, 0)
    lab_ch = newlab("chunk")
    a.label(lab_ch)
    a.other("s_waitcnt vmcnt(4) lgkmcnt(0)")
    a.barrier()

    def kread(kt):
        for ds in range(4):
            a.dsread(Kf[kt & 1][4 * ds:4 * ds + 4], vKx[ds], kt * 4096, tag=f"k{kt}")

    kread(0)
    kread(1)
    labskip = newlab("nodma")
    a.other("s_cmp_ge_u32 s3, 8")
    a.other(f"s_cbranch_scc1 {labskip}")
    a.salu("s_add_u32", sD1, sGC, 2)
    a.salu("s_lshl_b32", sD1, sD1, 14)
    nextslot(sD2, sSl, 2)
    kv_dma(sD1, sD2)
    a.raw(labskip + ":")
    for kt in range(4):
        a.wait(lg=f"k{kt}")
        for ds in range(4):
            a.mfma(Sb[4 * kt:4 * kt + 4], Kf[kt & 1][4 * ds:4 * ds + 4], Qw[4 * ds:4 * ds + 4],
                   Sb[4 * kt:4 * kt + 4] if ds else 0)
        if kt + 2 < 4:
            kread(kt + 2)

    def vread(f):
        ks, dt = f >> 3, f & 7
        for h in range(2):
            a.put(I(f"ds_read_b64_tr_b16 {Vf[f % NVF][2 * h:2 * h + 2]}, {vVa[dt & 1]} offset:{(ks * 2 + h) * 4096 + dt * 128}", "ds",
                    rd=[vVa[dt & 1]], wr=[Vf[f % NVF][2 * h:2 * h + 2]], tag=f"v{f}"))

    for f in range(NVF - 1):
        vread(f)
    a.valu("v_max3_f32", mx, Sb[0], Sb[1], Sb[2])
    for k in range(3, 15, 2):
        a.valu("v_max3_f32", mx, mx, Sb[k], Sb[k + 1])
    a.valu("v_max_f32", mx, mx, Sb[15])
    a.valu("v_sub_f32", tt, mx, m)
    a.put(I(f"v_cmp_lt_f32 vcc, {sTau}, {tt}", "valu", rd=[sTau, tt], wr=["vcc"]))
    labnr = newlab("nors")
    a.other("s_nop 1")
    a.other(f"s_cbranch_vccz {labnr}")
    a.valu("v_max_f32", mx, mx, m)
    for wh in (32, 16):
        a.valu("v_mov_b32", tt, mx)
        a.permlane(wh, mx, tt)
        a.valu("v_max_f32", mx, mx, tt)
    a.valu("v_sub_f32", al, m, mx)
    a.valu("v_mul_f32", al, sC, al)
    a.trans("v_exp_f32", al, al)
    a.valu("v_mul_f32", mc, sC, mx)
    a.valu("v_mov_b32", m, mx)
    a.valu("v_mul_f32", Lac[0], Lac[0], al)
    for k in range(32):
        a.valu("v_mul_f32", O[k], O[k], al)
    a.other("s_nop 1")
    a.raw(labnr + ":")
    for k in range(8):
        for e in range(2):
            a.valu("v_fma_f32", Sb[2 * k + e], Sb[2 * k + e], sC, mc, mods={3: "-{}"})
        for e in range(2):
            a.trans("v_exp_f32", Sb[2 * k + e], Sb[2 * k + e])
        a.valu("v_cvt_pk_bf16_f32", P[k], Sb[2 * k], Sb[2 * k + 1])
    for f in range(16):
        if f + NVF - 1 < 16:
            vread(f + NVF - 1)
        if f % 2 == 0:
            a.wait(lg=f"v{f + 1}")
        ks, dt = f >> 3, f & 7
        if dt == 0:
            a.mfma(Lac, Ones, P[4 * ks:4 * ks + 4], Lac)
        a.mfma(O[4 * dt:4 * dt + 4], Vf[f % NVF], P[4 * ks:4 * ks + 4], O[4 * dt:4 * dt + 4])
    nextslot(sD1, sSl, 1)
    a.salu("s_sub_u32", sD2, sD1, sSl)
    a.salu("s_mov_b32", sSl, sD1)
    for r_ in vKx + vVa:
        a.valu("v_add_u32", r_, sD2, r_)
    a.salu("s_add_u32", sGC, sGC, 1)
    a.salu("s_add_u32", sCh, sCh, 1)
    a.other("s_nop 7")
    a.other(f"s_cmp_lt_u32 s{sCh.n}, 8")
    a.other(f"s_cbranch_scc1 {lab_ch}")
    a.other("s_nop 7")
    a.hist = []
    pk = V(104, 16)
    a.trans("v_rcp_f32", al, Lac[0])
    for k in range(32):
        a.valu("v_mul_f32", O[k], O[k], al)
    for j in range(4):
        for e in range(4):
            dt = 2 * j + (e >> 1)
            r = 2 * (e & 1)
            a.valu("v_cvt_pk_bf16_f32", pk[4 * j + e], O[4 * dt + r], O[4 * dt + r + 1])
    a.salu("s_lshl_b32", sT1, sW, 17)
    a.salu("s_add_u32", sT1, sT1, sOB)
    a.salu("s_lshl_b32", sT2, sIt, 12)
    a.salu("s_add_u32", sT1, sT1, sT2)
    for j in range(4):
        a.bstore(pk[4 * j:4 * j + 4], vOSt, srdWS, sT1, j * 1024, flags=OSF)
    for k in range(16):
        a.valu("v_mov_b32", Qw[k], Qf[1][k])
    stampA(4)
    a.salu("s_add_u32", sIt, sIt, 1)
    a.other(f"s_cmp_lt_u32 s{sIt.n}, 2")
    a.other(f"s_cbranch_scc1 {lab_item}")
    stamp(29, True)
    a.label("L_attn_end")
    a.other("s_endpgm")


def gen_oproj(a):
    a.raw(".p2align 8")
    a.raw("oproj_kernel:")
    a.other("s_cmp_ge_u32 s2, 240")
    a.other("s_cbranch_scc1 L_oproj_end")
    load_ptrs(a)
    sW, sP, sRB, sNB = S(3), S(4), S(5), S(6)
    sLO, sHI = S(11), S(12)
    srdO, srdWO, srdOUT = S(44, 4), S(48, 4), S(52, 4)
    a.salu("s_and_b32", S(7), S(2), 7)
    a.salu("s_lshr_b32", S(8), S(2), 3)
    a.salu("s_lshr_b32", sP, S(7), 2)
    a.salu("s_mul_i32", S(9), S(8), 205)
    a.salu("s_lshr_b32", S(9), S(9), 10)
    a.salu("s_and_b32", S(13), S(7), 3)
    a.salu("s_mul_i32", S(13), S(13), 6)
    a.salu("s_add_u32", sRB, S(13), S(9))
    a.salu("s_mul_i32", S(9), S(9), 5)
    a.salu("s_sub_u32", sNB, S(8), S(9))
    a.salu("s_mov_b32", S(75), S(8))
    a.salu("s_mov_b32", sLO, "0x05040100")
    a.salu("s_mov_b32", sHI, "0x07060302")
    vT = V(0)
    vLane, vQ, vG, vWv = V(1), V(2), V(3), V(4)
    a.valu("v_and_b32", vLane, 63, vT)
    a.valu("v_and_b32", vQ, 15, vT)
    a.valu("v_lshrrev_b32", vG, 4, vLane)
    a.valu("v_lshrrev_b32", vWv, 6, vT)
    a.rfl(sW, vWv)
    a.other("s_waitcnt lgkmcnt(0)")
    a.other("s_cmp_eq_u32 s4, 0")
    a.other("s_cselect_b64 s[64:65], s[24:25], s[34:35]")
    mk_srd(a, 48, S(64), S(65), 4096 * 1280)
    a.salu("s_mul_i32", S(7), sP, OWS_P)
    a.salu("s_add_u32", S(8), S(40), S(7))
    a.salu("s_addc_u32", S(9), S(41), 0)
    mk_srd(a, 44, S(8), S(9), OWS_P)
    mk_srd(a, 52, S(36), S(37), 1152 * 2560)
    sOb, sWb = S(72), S(73)
    a.salu("s_mul_i32", S(7), sRB, 3 * 128)
    a.salu("s_lshl_b32", S(8), sW, 5)
    a.salu("s_add_u32", S(7), S(7), S(8))
    a.salu("s_lshl_b32", sOb, S(7), 10)
    a.salu("s_mul_i32", S(7), sW, 32 * 40960)
    a.salu("s_lshl_b32", S(8), sNB, 8)
    a.salu("s_add_u32", sWb, S(7), S(8))
    vO = [V(5 + i) for i in range(3)]
    vWo = [V(11), V(12)]
    vL16, t0, t1, vRW, vRR, vOUT = V(15), V(16), V(17), V(18), V(19), V(20)
    a.valu("v_lshlrev_b32", vL16, 4, vLane)
    for i in range(3):
        a.valu("v_add_u32", vO[i], i * 131072, vL16)
    a.valu("v_mul_u32_u24", t0, 4 * 1280, vG)
    a.valu("v_lshl_add_u32", vWo[0], vQ, 4, t0)
    a.valu("v_add_u32", vWo[1], 16 * 1280, vWo[0])
    a.valu("v_mul_u32_u24", t0, 24576, vWv)
    a.valu("v_add_u32", vRW, t0, vL16)
    a.valu("v_lshl_add_u32", vRR, vWv, 13, vL16)
    vRR2 = V(21)
    a.valu("v_add_u32", vRR2, 49152, vRR)
    a.salu("s_mul_i32", S(7), sRB, 48 * 2560)
    a.salu("s_mul_i32", S(8), sP, 1280)
    a.salu("s_add_u32", S(7), S(7), S(8))
    a.salu("s_lshl_b32", S(8), sNB, 8)
    a.salu("s_add_u32", S(74), S(7), S(8))
    a.valu("v_lshl_add_u32", t0, vWv, 4, vQ)
    a.valu("v_mul_u32_u24", t0, 2560, t0)
    a.valu("v_lshl_add_u32", vOUT, vG, 6, t0)

    stmp = [S(76 + i) for i in range(8)]
    stc = [0]

    def soff(val, base):
        r = stmp[stc[0] % len(stmp)]
        stc[0] += 1
        a.salu("s_add_u32", r, base, val)
        return r

    _st = mk_stamper(a, sW, 3 << 18)

    def stamp(i, real=False):
        _st(i, t0, t1, real)

    stamp(0)
    stamp(28, True)
    D = D2
    WR = [V(32 + 32 * i, 32) for i in range(D)]
    OF = [A(96 + 12 * i, 12) for i in range(D)]
    T = V(32 + 32 * D, 32)

    def acc(i, t):
        return A((i * 8 + t) * 4, 4)

    def loads(i):
        st = i % D
        sI, sJ = S(92), S(93)
        a.salu("s_add_u32", sI, S(75), i)
        a.salu("s_and_b32", sI, sI, RB - 1)
        a.salu("s_add_u32", sI, sI, i & ~(RB - 1))
        a.salu("s_lshl_b32", sJ, sI, 10)
        so = soff(sJ, sOb)
        for k in range(3):
            a.bload(OF[st][4 * k:4 * k + 4], vO[k], srdO, so, tag=f"L{i}")
        a.salu("s_mul_i32", sJ, sI, 40960)
        so = soff(sJ, sWb)
        for e in range(8):
            a.bload(WR[st][4 * e:4 * e + 4], vWo[e >> 2], srdWO, so, (e & 3) * 1280, tag=f"L{i}")

    for i in range(D):
        loads(i)
    for i in range(32):
        st = i % D
        a.wait(vm=f"L{i}")
        w = WR[st]
        for t in range(8):
            for ii in range(4):
                a.valu("v_perm_b32", T[4 * t + ii], w[4 * (2 * ii + 1) + (t >> 1)], w[4 * (2 * ii) + (t >> 1)],
                       sHI if (t & 1) else sLO)
        for t in range(8):
            for k in range(3):
                a.mfma(acc(k, t), T[4 * t:4 * t + 4], OF[st][4 * k:4 * k + 4], acc(k, t) if i else 0)
        if i + D < 32:
            loads(i + D)
    stamp(1)
    for k in range(3):
        for t in range(8):
            a.dswrite(vRW, acc(k, t), (k * 8 + t) * 1024)
    a.wait(lg="all")
    a.barrier()
    a.other("s_cmp_ge_u32 s3, 3")
    a.other("s_cbranch_scc1 L_oproj_end")
    Rr = V(32, 128)
    pk = V(160, 16)
    for s in range(4):
        for t in range(8):
            a.dsread(Rr[(s * 8 + t) * 4:(s * 8 + t) * 4 + 4], vRR if s < 2 else vRR2, (s & 1) * 24576 + t * 1024)
    a.wait(lg="all")
    for t in range(8):
        for r in range(4):
            d = Rr[t * 4 + r]
            for s in range(1, 4):
                a.valu("v_add_f32", d, d, Rr[(s * 8 + t) * 4 + r])
    for r in range(4):
        for tp in range(4):
            a.valu("v_cvt_pk_bf16_f32", pk[4 * r + tp], Rr[(2 * tp) * 4 + r], Rr[(2 * tp + 1) * 4 + r])
    for r in range(4):
        a.bstore(pk[4 * r:4 * r + 4], vOUT, srdOUT, S(74), r * 16)
    stamp(2)
    stamp(29, True)
    a.label("L_oproj_end")
    a.other("s_endpgm")


def kd(name, nvgpr, accum, nsgpr=100):
    return f""".amdhsa_kernel {name}
  .amdhsa_next_free_vgpr {nvgpr}
  .amdhsa_next_free_sgpr {nsgpr}
  .amdhsa_accum_offset {accum}
  .amdhsa_group_segment_fixed_size 0
  .amdhsa_kernarg_size 104
  .amdhsa_user_sgpr_count 2
  .amdhsa_user_sgpr_kernarg_segment_ptr 1
  .amdhsa_system_sgpr_workgroup_id_x 1
.end_amdhsa_kernel
"""


def main(out):
    a = Asm()
    gen_attn(a)
    c1 = dict(a.counts)
    a.hist = []
    a.vm = []
    a.lg = []
    gen_oproj(a)
    txt = HEADER
    txt += f"; @launch kernel=attn_kernel grid=(256,1,1) block=(576,1,1) lds={LDS1}\n"
    txt += "; @launch kernel=oproj_kernel grid=(240,1,1) block=(256,1,1) lds=98304\n"
    txt += '.amdgcn_target "amdgcn-amd-amdhsa--gfx950"\n.text\n'
    txt += ".globl attn_kernel\n.type attn_kernel,@function\n.globl oproj_kernel\n.type oproj_kernel,@function\n"
    txt += a.text()
    txt += '.section .rodata,"a"\n.p2align 6\n'
    txt += kd("attn_kernel", 168, 168)
    txt += ".p2align 6\n"
    txt += kd("oproj_kernel", 256 + 192, 256)
    open(out, "w").write(txt)
    print("attn counts", c1, "nops", a.n_nops, "bytes", len(txt))


if __name__ == "__main__":
    if len(sys.argv) > 2 and sys.argv[2] == "stamp":
        STAMP = True
    main(sys.argv[1] if len(sys.argv) > 1 else f"cdna_kernels/{NAME}.s")
```
